```python
import torch

def _softmax(x, axis=-1):
    return torch.softmax(x, dim=axis)

def _gelu(x):
    return torch.nn.functional.gelu(x, approximate='tanh')

def _silu(x):
    return torch.nn.functional.silu(x)

def _sigmoid(x):
    return torch.sigmoid(x)

def _layernorm(x, axis=-1, eps=1e-05):
    m = x.mean(dim=axis, keepdim=True)
    v = x.var(dim=axis, keepdim=True, unbiased=False)
    return (x - m) / torch.sqrt(v + eps)

def _scatter_add(tgt, idx, src, axis=0):
    return tgt.clone().index_add_(axis, idx, src)

def _segment_sum(src, seg, n):
    out = torch.zeros((n,) + src.shape[1:], dtype=src.dtype)
    return out.index_add_(0, seg, src)

def _pad(x, pw):
    flat = tuple((v for pair in reversed(pw) for v in pair))
    return torch.nn.functional.pad(x, flat)
kernel_name = 'standalone__autoregressive_conv_wavenet__speech'

def setup_inputs():

    _w = lambda a: (lambda t: t.to(torch.bfloat16) if t.is_floating_point() else t)(torch.as_tensor(a))
    B, T, D, K = (2, 1000, 512, 3)
    return {'x': _w((lambda *s: torch.randn(*s, dtype=torch.bfloat16) * 0.1)(B, T, D)), 'w': _w((lambda *s: torch.randn(*s, dtype=torch.bfloat16) * 0.1)(K, D, 2 * D)), 'w_o': _w((lambda *s: torch.randn(*s, dtype=torch.bfloat16) * 0.05)(D, D))}

def reference(x, w, w_o):
    B, T, D = x.shape
    K = w.shape[0]
    dil = 2
    pad = (K - 1) * dil
    xp = _pad(x, ((0, 0), (pad, 0), (0, 0)))
    h = torch.einsum('btc,cd->btd', xp[:, pad:pad + T, :], w[0])
    for i in range(1, K):
        off = pad - i * dil
        h = h + torch.einsum('btc,cd->btd', xp[:, off:off + T, :], w[i])
    f = h[..., :D].clone()
    g = h[..., D:].clone()
    z = torch.tanh(f) * _sigmoid(g)
    return z @ w_o
```

```python
import sys, argparse
ap = argparse.ArgumentParser()
ap.add_argument("--stamps", type=int, default=0)
ap.add_argument("--rot", type=int, default=1)
ap.add_argument("--name", default="standalone__autoregressive_conv_wavenet__speech_kernel")
args = ap.parse_args()
STAMPS = args.stamps
name = args.name
out = []
def e(s): out.append("    " + s)
def lab(s): out.append(s + ":")
def cm(s): out.append("    ; " + s)

LDS_W = 24576
LDS_TOTAL = 4 * LDS_W
XHALF = 9216

hdr = """; Kernarg layout for this problem (48 bytes, ptrs only, base s[0:1]):
"""
out.append(hdr + f"; @launch grid=(256,1,1) block=(256,1,1) lds={LDS_TOTAL}")
out.append('.amdgcn_target "amdgcn-amd-amdhsa--gfx950"')
out.append(".text"); out.append(f".globl {name}"); out.append(".p2align 8"); out.append(f".type {name},@function"); lab(name)

SX, SW, SWO, SOUT, SDBG, SZ = 16, 20, 24, 28, 32, 36
sMT, sNT, sWV, sT0, sTMP, sTMP2, sLB = 40, 41, 42, 43, 44, 45, 46
sSELLO, sSELHI = 47, 48
sGOFF = 50
sBOFF = 62
sH0, sR6 = 66, 67
sC1, sC2, sMASK = 68, 69, 70
sLD = 71
sST = 80
vLANE = 1
vT = [2, 3, 4, 5, 6, 7, 8, 9]
vXA = 10
vW, vWO, vZL, vZS, vOUT, vRW, vX0, vXO, vXE = 22, 23, 24, 25, 26, 27, 28, 29, 30
vR = 32
vF = 160
vTT = 224
aXF = 128
aACC2 = 160

nst = [0]
def stamp():
    if STAMPS:
        i = nst[0]; nst[0] += 1
        e(f"s_memtime s[{sST+2*i}:{sST+2*i+1}]")

def srd(base, lo, hi, nbytes):
    e(f"s_mov_b32 s{base}, s{lo}"); e(f"s_mov_b32 s{base+1}, s{hi}")
    e(f"s_mov_b32 s{base+2}, {nbytes}"); e(f"s_mov_b32 s{base+3}, 0x20000")

if STAMPS: e("s_memrealtime s[76:77]")
stamp()
e("s_load_dwordx4 s[4:7], s[0:1], 0")
e("s_load_dwordx4 s[8:11], s[0:1], 16")
e("s_load_dwordx4 s[12:15], s[0:1], 32")
e("s_cmp_ge_u32 s2, 256")
e("s_cbranch_scc1 L_end")
cm("tile mapping: xcd = wg&7, idx = wg>>3 ; batch = xcd&1 ; mti = idx&15 ; nt = (xcd>>1)*2 + (idx>>4)")
e(f"s_lshr_b32 s{sTMP}, s2, 3")
e(f"s_and_b32 s{sT0}, s{sTMP}, 15")
e(f"s_and_b32 s3, s2, 1")
e(f"s_lshl_b32 s{sMT}, s3, 4")
e(f"s_add_u32 s{sMT}, s{sMT}, s{sT0}")
e(f"s_and_b32 s{sNT}, s2, 6")
e(f"s_lshr_b32 s{sTMP2}, s{sTMP}, 4")
e(f"s_add_u32 s{sNT}, s{sNT}, s{sTMP2}")
cm("rotation: 12 starting points from mti: rot = mti mod 12 ; h0 = rot/6 ; r6 = rot%6")
if args.rot:
    e(f"s_cmp_ge_u32 s{sT0}, 12")
    e(f"s_cselect_b32 s{sTMP2}, 9, 0")
    e(f"s_sub_u32 s{sR6}, s{sT0}, s{sTMP2}")
    e(f"s_cmp_ge_u32 s{sR6}, 6")
    e(f"s_cselect_b32 s{sH0}, 1, 0")
    e(f"s_cselect_b32 s{sTMP2}, 6, 0")
    e(f"s_sub_u32 s{sR6}, s{sR6}, s{sTMP2}")
else:
    e(f"s_mov_b32 s{sH0}, 0"); e(f"s_mov_b32 s{sR6}, 0")
e(f"s_lshl_b32 s{sT0}, s{sT0}, 6")
e(f"v_lshrrev_b32 v{vT[0]}, 6, v0")
e(f"v_and_b32 v{vLANE}, 63, v0")
e(f"s_mov_b32 s{sSELLO}, 0x05040100")
e(f"v_readfirstlane_b32 s{sWV}, v{vT[0]}")
e(f"s_mov_b32 s{sSELHI}, 0x07060302")
cm("x DMA voffsets. lane: row = l>>3, cpos = l&7 ; src chunk = cpos ^ ((4i + (l>>4))&7)")
e(f"v_lshrrev_b32 v{vT[1]}, 4, v{vLANE}")
e(f"v_and_b32 v{vT[2]}, 7, v{vLANE}")
e(f"v_xor_b32 v{vT[2]}, v{vT[2]}, v{vT[1]}")
e(f"v_lshlrev_b32 v{vT[2]}, 4, v{vT[2]}")
e(f"v_lshrrev_b32 v{vT[3]}, 3, v{vLANE}")
e(f"v_lshlrev_b32 v{vT[3]}, 10, v{vT[3]}")
e(f"v_add_u32 v{vT[2]}, v{vT[2]}, v{vT[3]}")
e(f"s_lshl_b32 s{sTMP}, s{sWV}, 8")
e(f"s_lshl_b32 s{sTMP2}, s{sT0}, 10")
e(f"s_add_u32 s{sTMP}, s{sTMP}, s{sTMP2}")
e(f"s_sub_u32 s{sTMP2}, s{sTMP}, 4096")
e(f"v_add_u32 v{vX0}, s{sTMP2}, v{vT[2]}")
e(f"s_add_u32 s{sTMP2}, s{sTMP}, 4096")
e(f"v_add_u32 v{vXE}, s{sTMP2}, v{vT[2]}")
e(f"v_xor_b32 v{vXO}, 64, v{vXE}")
cm("w voffset: p=l&15: (p&2?1024:0) + nt*128 + (2*(p>>2)+(p&1))*16 + (128*wave + 8*kgrp)*2048")
e(f"v_and_b32 v{vT[4]}, 15, v{vLANE}")
e(f"v_lshrrev_b32 v{vT[2]}, 2, v{vT[4]}")
e(f"v_lshlrev_b32 v{vT[2]}, 5, v{vT[2]}")
e(f"v_and_b32 v{vT[3]}, 1, v{vT[4]}")
e(f"v_lshlrev_b32 v{vT[3]}, 4, v{vT[3]}")
e(f"v_add_u32 v{vT[2]}, v{vT[2]}, v{vT[3]}")
e(f"v_and_b32 v{vT[3]}, 2, v{vT[4]}")
e(f"v_lshlrev_b32 v{vT[3]}, 9, v{vT[3]}")
e(f"v_add_u32 v{vT[2]}, v{vT[2]}, v{vT[3]}")
e(f"v_lshlrev_b32 v{vT[3]}, 14, v{vT[1]}")
e(f"v_add_u32 v{vT[2]}, v{vT[2]}, v{vT[3]}")
e(f"s_lshl_b32 s{sTMP}, s{sWV}, 18")
e(f"s_lshl_b32 s{sTMP2}, s{sNT}, 7")
e(f"s_add_u32 s{sTMP}, s{sTMP}, s{sTMP2}")
e(f"v_add_u32 v{vW}, s{sTMP}, v{vT[2]}")
cm("slot -> group offsets (sGOFF[u]); slot u<6: half h0 ; idx6 = (u+r6) mod 6 ; tap = idx6>>1 ; s = 2*half + (idx6&1)")
for u in range(6):
    e(f"s_add_u32 s{sTMP}, s{sR6}, {u}")
    e(f"s_cmp_ge_u32 s{sTMP}, 6")
    e(f"s_cselect_b32 s{sTMP2}, 6, 0")
    e(f"s_sub_u32 s{sTMP}, s{sTMP}, s{sTMP2}")
    e(f"s_lshr_b32 s{sTMP2}, s{sTMP}, 1")
    e(f"s_lshl_b32 s{sTMP2}, s{sTMP2}, 20")
    e(f"s_and_b32 s{sTMP}, s{sTMP}, 1")
    e(f"s_lshl_b32 s{sTMP}, s{sTMP}, 16")
    e(f"s_or_b32 s{sGOFF+u}, s{sTMP}, s{sTMP2}")
e(f"s_lshl_b32 s{sTMP}, s{sH0}, 17")
for u in range(6):
    e(f"s_or_b32 s{sGOFF+u}, s{sGOFF+u}, s{sTMP}")
    e(f"s_xor_b32 s{sGOFF+6+u}, s{sGOFF+u}, 0x20000")
e(f"s_mul_i32 s{sLB}, s{sWV}, {LDS_W}")
e("s_waitcnt lgkmcnt(0)")
stamp()
cm("SRDs (x and out per batch)")
e(f"s_mul_i32 s{sTMP}, s3, 1024000")
e(f"s_add_u32 s{SX}, s4, s{sTMP}"); e(f"s_addc_u32 s{SX+1}, s5, 0"); e(f"s_mov_b32 s{SX+2}, 1024000"); e(f"s_mov_b32 s{SX+3}, 0x20000")
srd(SW, 6, 7, 3145728)

ldn = [0]
def ldtmp():
    r = sLD + (ldn[0] % 4); ldn[0] += 1
    return r

def x_dma(second):
    e(f"s_xor_b32 s{sTMP}, s{sH0}, {second}")
    e(f"s_lshl_b32 s{sTMP}, s{sTMP}, 7")
    for i in range(9):
        e(f"s_add_u32 m0, s{sLB}, {second*XHALF + i*1024}")
        if i == 0:
            e("s_nop 0")
            e(f"buffer_load_dwordx4 v{vX0}, s[{SX}:{SX+3}], s{sTMP} offen lds")
        else:
            r = ldtmp()
            e(f"s_add_u32 s{r}, s{sTMP}, {(i-1)*8192}")
            if i == 8: e("s_mov_b64 exec, 0xffffffff")
            e(f"buffer_load_dwordx4 v{vXO if i & 1 else vXE}, s[{SX}:{SX+3}], s{r} offen lds")
            if i == 8: e("s_mov_b64 exec, -1")

def w_load_instrs(u):
    L = []
    base = vR + (u % 4) * 32
    for jj in range(8):
        r = base + jj * 4
        ins = []
        if u < 12:
            if jj % 2 == 0:
                t = ldtmp()
                ins.append(f"s_add_u32 s{t}, s{sGOFF+u}, {jj*2048}")
            ins.append(f"buffer_load_dwordx4 v[{r}:{r+3}], v{vW}, s[{SW}:{SW+3}], s{t} offen" + (" offset:2048" if jj % 2 else ""))
        else:
            s2 = u - 12
            if jj % 4 == 0:
                t = ldtmp()
                ins.append(f"s_mov_b32 s{t}, {(32*s2 + jj)*1024}")
            ins.append(f"buffer_load_dwordx4 v[{r}:{r+3}], v{vWO}, s[{SWO}:{SWO+3}], s{t} offen" + (f" offset:{(jj%4)*1024}" if jj % 4 else ""))
        L.append(ins)
    return L

def perm_instrs(src, dst, kp):
    L = []
    for d in range(4):
        a = src + (2*kp) * 4 + d; b = src + (2*kp+1) * 4 + d
        L.append(f"v_perm_b32 v{dst + (2*d)*4 + kp}, v{b}, v{a}, s{sSELLO}")
        L.append(f"v_perm_b32 v{dst + (2*d+1)*4 + kp}, v{b}, v{a}, s{sSELHI}")
    return L

x_dma(0)
for u in range(3):
    for ins in w_load_instrs(u):
        for i in ins: e(i)
x_dma(1)
for ins in w_load_instrs(3):
    for i in ins: e(i)
stamp()
cm("remaining SRDs and addresses (while loads fly)")
srd(SWO, 8, 9, 524288)
e(f"s_mul_i32 s{sTMP}, s3, 1024000")
e(f"s_add_u32 s{SOUT}, s10, s{sTMP}"); e(f"s_addc_u32 s{SOUT+1}, s11, 0"); e(f"s_mov_b32 s{SOUT+2}, 1024000"); e(f"s_mov_b32 s{SOUT+3}, 0x20000")
srd(SDBG, 12, 13, 256)
srd(SZ, 14, 15, 0x10000000)
cm("block offsets: static beta -> actual b = (beta + wave + 1)&3 ; byte off = b*16*128")
for b in range(4):
    e(f"s_add_u32 s{sTMP}, s{sWV}, {b+1}")
    e(f"s_and_b32 s{sTMP}, s{sTMP}, 3")
    e(f"s_lshl_b32 s{sBOFF+b}, s{sTMP}, 11")
cm("x frag LDS addresses per slot: rho = m + 4 - 2*tap ; addr = LB + region*XHALF + rho*128 + (((4*(s&1)+kgrp) ^ ((rho>>1)&7))<<4)")
for u in range(6):
    e(f"s_lshr_b32 s{sTMP}, s{sGOFF+u}, 20")
    e(f"s_lshl_b32 s{sTMP}, s{sTMP}, 1")
    e(f"s_sub_u32 s{sTMP}, 4, s{sTMP}")
    e(f"v_add_u32 v{vT[2]}, s{sTMP}, v{vT[4]}")
    e(f"s_lshr_b32 s{sTMP2}, s{sGOFF+u}, 14")
    e(f"s_and_b32 s{sTMP2}, s{sTMP2}, 4")
    e(f"v_bfe_u32 v{vT[3]}, v{vT[2]}, 1, 3")
    e(f"v_xor_b32 v{vT[3]}, v{vT[3]}, v{vT[1]}")
    e(f"v_xor_b32 v{vT[3]}, s{sTMP2}, v{vT[3]}")
    e(f"v_lshlrev_b32 v{vT[3]}, 4, v{vT[3]}")
    e(f"v_lshl_add_u32 v{vT[3]}, v{vT[2]}, 7, v{vT[3]}")
    e(f"v_add_u32 v{vXA+u}, s{sLB}, v{vT[3]}")
    e(f"v_add_u32 v{vXA+6+u}, {XHALF}, v{vXA+u}")
cm("w_o voffset: (128*wave + 8*kgrp)*1024 + (nt>>1)*256 + p*16")
e(f"v_lshlrev_b32 v{vT[2]}, 13, v{vT[1]}")
e(f"v_lshl_add_u32 v{vT[2]}, v{vT[4]}, 4, v{vT[2]}")
e(f"s_lshl_b32 s{sTMP}, s{sWV}, 17")
e(f"s_lshr_b32 s{sTMP2}, s{sNT}, 1")
e(f"s_lshl_b32 s{sTMP2}, s{sTMP2}, 8")
e(f"s_add_u32 s{sTMP}, s{sTMP}, s{sTMP2}")
e(f"v_add_u32 v{vWO}, s{sTMP}, v{vT[2]}")
cm("z store voffset: (mt*64 + 16*wave + m)*1024 + nt*128 + q*32")
e(f"v_lshlrev_b32 v{vT[2]}, 10, v{vT[4]}")
e(f"v_lshl_add_u32 v{vT[2]}, v{vT[1]}, 5, v{vT[2]}")
e(f"s_lshl_b32 s{sTMP}, s{sMT}, 16")
e(f"s_lshl_b32 s{sTMP2}, s{sWV}, 14")
e(f"s_add_u32 s{sTMP}, s{sTMP}, s{sTMP2}")
e(f"s_lshl_b32 s{sTMP2}, s{sNT}, 7")
e(f"s_add_u32 s{sTMP}, s{sTMP}, s{sTMP2}")
e(f"v_add_u32 v{vZS}, s{sTMP}, v{vT[2]}")
cm("z load voffset: row = 32*(nt&1) + ((16*betab + m) ^ (16*cb + 2*cr)), cb = wave>>1, cr = wave&1 ; col bytes = wave*256 + kgrp*16 (+ s2*64)")
e(f"s_lshr_b32 s{sTMP}, s{sWV}, 1")
e(f"s_lshl_b32 s{sTMP}, s{sTMP}, 4")
e(f"s_and_b32 s{sTMP2}, s{sWV}, 1")
e(f"s_lshl_b32 s{sTMP2}, s{sTMP2}, 1")
e(f"s_or_b32 s{sC1}, s{sTMP}, s{sTMP2}")
e(f"v_xor_b32 v{vT[2]}, s{sC1}, v{vT[4]}")
e(f"v_lshlrev_b32 v{vT[2]}, 10, v{vT[2]}")
e(f"v_lshl_add_u32 v{vT[2]}, v{vT[1]}, 4, v{vT[2]}")
e(f"s_lshl_b32 s{sTMP}, s{sMT}, 16")
e(f"s_and_b32 s{sTMP2}, s{sNT}, 1")
e(f"s_lshl_b32 s{sTMP2}, s{sTMP2}, 15")
e(f"s_add_u32 s{sTMP}, s{sTMP}, s{sTMP2}")
e(f"s_lshl_b32 s{sTMP2}, s{sWV}, 8")
e(f"s_add_u32 s{sTMP}, s{sTMP}, s{sTMP2}")
e(f"v_add_u32 v{vZL}, s{sTMP}, v{vT[2]}")
cm("out voffset: own static unit (betab=1, rp=1): static row 16+4q+2+{0,1} ^ C1 ; bytes = (t0 + 32*(nt&1) + row)*1024 + (nt>>1)*256 + p*16")
e(f"v_lshlrev_b32 v{vT[2]}, 2, v{vT[1]}")
e(f"v_add_u32 v{vT[2]}, 18, v{vT[2]}")
e(f"v_xor_b32 v{vT[2]}, s{sC1}, v{vT[2]}")
e(f"v_lshlrev_b32 v{vT[2]}, 10, v{vT[2]}")
e(f"v_lshl_add_u32 v{vT[2]}, v{vT[4]}, 4, v{vT[2]}")
e(f"s_and_b32 s{sTMP2}, s{sNT}, 1")
e(f"s_lshl_b32 s{sTMP2}, s{sTMP2}, 5")
e(f"s_add_u32 s{sTMP}, s{sT0}, s{sTMP2}")
e(f"s_lshl_b32 s{sTMP}, s{sTMP}, 10")
e(f"s_lshr_b32 s{sTMP2}, s{sNT}, 1")
e(f"s_lshl_b32 s{sTMP2}, s{sTMP2}, 8")
e(f"s_add_u32 s{sTMP}, s{sTMP}, s{sTMP2}")
e(f"v_add_u32 v{vOUT}, s{sTMP}, v{vT[2]}")
cm("reduction write addr = LB + lane*16")
e(f"v_lshlrev_b32 v{vT[2]}, 4, v{vLANE}")
e(f"v_add_u32 v{vRW}, s{sLB}, v{vT[2]}")

def xread_instrs(u):
    L = []
    for b in range(4):
        t = vT[4 + b]
        L.append([f"v_add_u32 v{vTT+b}, s{sBOFF+b}, v{vXA+u}",
                  f"ds_read_b128 a[{aXF + (u%2)*16 + b*4}:{aXF + (u%2)*16 + b*4 + 3}], v{vTT+b}"])
    return L

cm("wait x half0 + G0 ; outstanding younger: G1 G2 Xh1 G3 = 33")
e("s_waitcnt vmcnt(41)")
for ins in xread_instrs(0):
    for i in ins: e(i)
for kp in range(4):
    e(f"s_waitcnt vmcnt({33 + 6 - 2*kp})")
    for i in perm_instrs(vR, vF, kp): e(i)
stamp()

def acc(b, j): return (b * 8 + j) * 4

for u in range(12):
    cm(f"---- slot {u}")
    F = vF + (u % 2) * 32
    XF = aXF + (u % 2) * 16
    mf = []
    for b in range(4):
        for j in range(8):
            c = "0" if u == 0 else f"a[{acc(b,j)}:{acc(b,j)+3}]"
            mf.append(f"v_mfma_f32_16x16x32_bf16 a[{acc(b,j)}:{acc(b,j)+3}], v[{F+4*j}:{F+4*j+3}], a[{XF+4*b}:{XF+4*b+3}], {c}")
    fill = [[] for _ in range(32)]
    lds = w_load_instrs(u + 4)
    for i, ins in enumerate(lds): fill[2*i] += ins
    if u < 11:
        for i, ins in enumerate(xread_instrs(u + 1)): fill[2*i + 1] += ins
        extra = 9 if u in (0, 1) else 0
        for kp in range(4):
            p = perm_instrs(vR + ((u+1) % 4) * 32, vF + ((u+1) % 2) * 32, kp)
            fill[15 + 4*kp].append(f"s_waitcnt vmcnt({24 + extra + 6 - 2*kp})")
            for i in range(4):
                fill[16 + 4*kp + i] += p[2*i:2*i+2]
    e("s_waitcnt lgkmcnt(0)")
    if u == 0: e("s_nop 1")
    for i in range(32):
        e(mf[i])
        for ins in fill[i]: e(ins)
stamp()
cm("---- reduction 1")
e("s_nop 7")
for b in range(3):
    for j in range(8):
        e(f"ds_write_b128 v{vRW}, a[{acc(b,j)}:{acc(b,j)+3}] offset:{b*8192 + j*1024}")
cm("read addresses: beta -> src = (wave - 1 - beta)&3")
e(f"v_lshlrev_b32 v{vT[2]}, 4, v{vLANE}")
for b in range(3):
    e(f"s_sub_u32 s{sTMP}, s{sWV}, {b+1}")
    e(f"s_and_b32 s{sTMP}, s{sTMP}, 3")
    e(f"s_mul_i32 s{sTMP}, s{sTMP}, {LDS_W}")
    e(f"v_add_u32 v{vT[5+b]}, s{sTMP}, v{vT[2]}")
for i in range(32):
    e(f"v_accvgpr_read_b32 v{vF+i}, a{acc(3,0)+i}")
e("s_waitcnt lgkmcnt(0)")
e("s_barrier")
for j in range(8): e(f"ds_read_b128 v[{vF+32+4*j}:{vF+32+4*j+3}], v{vT[5]} offset:{j*1024}")
for j in range(8): e(f"ds_read_b128 v[{vTT+4*j}:{vTT+4*j+3}], v{vT[6]} offset:{8192 + j*1024}")
e("s_waitcnt lgkmcnt(8)")
for i in range(0, 32, 2): e(f"v_pk_add_f32 v[{vF+i}:{vF+i+1}], v[{vF+i}:{vF+i+1}], v[{vF+32+i}:{vF+32+i+1}]")
for j in range(8): e(f"ds_read_b128 v[{vF+32+4*j}:{vF+32+4*j+3}], v{vT[7]} offset:{16384 + j*1024}")
e("s_waitcnt lgkmcnt(8)")
for i in range(0, 32, 2): e(f"v_pk_add_f32 v[{vF+i}:{vF+i+1}], v[{vF+i}:{vF+i+1}], v[{vTT+i}:{vTT+i+1}]")
e("s_waitcnt lgkmcnt(0)")
for i in range(0, 32, 2): e(f"v_pk_add_f32 v[{vF+i}:{vF+i+1}], v[{vF+i}:{vF+i+1}], v[{vF+32+i}:{vF+32+i+1}]")
stamp()
cm("---- gating: h[j][r] in vF+4j+r ; f: r=0,1 ; g: r=2,3")
e(f"s_mov_b32 s{sTMP}, 0xc038aa3b")
e(f"s_mov_b32 s{sTMP2}, 0xbfb8aa3b")
e(f"s_mov_b32 s{sMASK}, 0x7fffffff")
Z = vTT
def gate(elems):
    T = [vF + 32 + 4*i for i in range(len(elems))]
    for (f, g, z), t in zip(elems, T): e(f"v_mul_f32 v{t}, s{sTMP}, |v{f}|")
    for (f, g, z), t in zip(elems, T): e(f"v_mul_f32 v{t+1}, s{sTMP2}, v{g}")
    for (f, g, z), t in zip(elems, T): e(f"v_exp_f32 v{t}, v{t}")
    for (f, g, z), t in zip(elems, T): e(f"v_exp_f32 v{t+1}, v{t+1}")
    for (f, g, z), t in zip(elems, T): e(f"v_fma_f32 v{t+2}, -v{f}, v{f}, |v{f}|")
    for (f, g, z), t in zip(elems, T): e(f"v_fma_f32 v{t+3}, v{t}, 0.5, 0.5")
    for (f, g, z), t in zip(elems, T): e(f"v_fma_f32 v{t}, v{t}, -0.5, 0.5")
    for (f, g, z), t in zip(elems, T): e(f"v_fma_f32 v{t+3}, v{t+3}, v{t+1}, v{t+3}")
    for (f, g, z), t in zip(elems, T): e(f"v_rcp_f32 v{t+3}, v{t+3}")
    for (f, g, z), t in zip(elems, T): e(f"v_med3_f32 v{t}, v{t}, v{t+2}, |v{f}|")
    for (f, g, z), t in zip(elems, T): e(f"v_bfi_b32 v{t}, s{sMASK}, v{t}, v{f}")
    for (f, g, z), t in zip(elems, T): e(f"v_mul_f32 v{z}, v{t}, v{t+3}")
for r in range(2):
    gate([(vF + 4*j + r, vF + 4*j + r + 2, Z + r*8 + j) for j in range(8)])
    P = Z + 16 + r*4
    for d in range(4):
        e(f"v_cvt_pk_bf16_f32 v{P+d}, v{Z + r*8 + 2*d}, v{Z + r*8 + 2*d + 1}")
    e(f"buffer_store_dwordx4 v[{P}:{P+3}], v{vZS}, s[{SZ}:{SZ+3}], 0 offen offset:{r*16} sc0 sc1")
stamp()
e("s_waitcnt vmcnt(0)")
e("s_barrier")
stamp()
cm("flag: wave 0 stores byte 1 at dbg[mt*8+nt]")
e(f"s_lshl_b32 s{sTMP}, s{sMT}, 3")
e(f"s_cmp_lg_u32 s{sWV}, 0")
e("s_cbranch_scc1 L_noflag")
e(f"s_add_u32 s{sTMP2}, s{sTMP}, s{sNT}")
e(f"v_mov_b32 v{vT[0]}, s{sTMP2}")
e(f"v_mov_b32 v{vT[1]}, 1")
e("s_mov_b64 exec, 1")
e(f"buffer_store_byte v{vT[1]}, v{vT[0]}, s[{SDBG}:{SDBG+3}], 0 offen sc0 sc1")
e("s_mov_b64 exec, -1")
lab("L_noflag")
cm("perm w_o: R0->F0, R1->F1, R2->TT, R3->R0")
FO = [vF, vF + 32, vTT, vR]
for s2 in range(4):
    for kp in range(4):
        for i in perm_instrs(vR + s2*32, FO[s2], kp): e(i)
cm("poll")
e(f"s_lshl_b32 s{sTMP2}, s{sWV}, 1")
e(f"s_add_u32 s{sTMP2}, s{sTMP}, s{sTMP2}")
e(f"v_mov_b32 v{vT[0]}, s{sTMP2}")
e(f"v_xor_b32 v{vT[2]}, 0x4000, v{vZL}")
e(f"s_mov_b32 s{sC2}, 0")
lab("L_poll")
e(f"buffer_load_ushort v{vT[1]}, v{vT[0]}, s[{SDBG}:{SDBG+3}], 0 offen sc0 sc1")
e("s_waitcnt vmcnt(0)")
e(f"v_readfirstlane_b32 s{sTMP}, v{vT[1]}")
e(f"s_cmp_eq_u32 s{sTMP}, 0x0101")
e("s_cbranch_scc1 L_go")
e("s_sleep 1")
e(f"s_add_u32 s{sC2}, s{sC2}, 1")
e(f"s_cmp_lt_u32 s{sC2}, 20000")
e("s_cbranch_scc1 L_poll")
lab("L_go")
stamp()
ZF = vR + 32
for s2 in range(4):
    for bb in range(2):
        r = ZF + (s2*2 + bb) * 4
        e(f"buffer_load_dwordx4 v[{r}:{r+3}], v{vZL if bb == 0 else vT[2]}, s[{SZ}:{SZ+3}], 0 offen offset:{s2*64} sc0 sc1")
def acc2(b, j): return aACC2 + (b*8 + j) * 4
for s2 in range(4):
    for bb in range(2):
        e(f"s_waitcnt vmcnt({7 - (s2*2 + bb)})")
        r = ZF + (s2*2 + bb) * 4
        for j in range(8):
            c = "0" if s2 == 0 else f"a[{acc2(bb,j)}:{acc2(bb,j)+3}]"
            e(f"v_mfma_f32_16x16x32_bf16 a[{acc2(bb,j)}:{acc2(bb,j)+3}], v[{r}:{r+3}], v[{FO[s2]+4*j}:{FO[s2]+4*j+3}], {c}")
stamp()
cm("---- reduction 2. region per wave: [0,8K): betab=0 b128 ; [8K,12K+): betab=1 rp=0 as b64 stored at lane*16 (low half)")
e("s_nop 7")
for j in range(8):
    e(f"ds_write_b128 v{vRW}, a[{acc2(0,j)}:{acc2(0,j)+3}] offset:{j*1024}")
for j in range(8):
    e(f"ds_write_b64 v{vRW}, a[{acc2(1,j)}:{acc2(1,j)+1}] offset:{8192 + j*1024}")
cm("owner o reads from src = o^d (d=1,2,3): static unit in src = (1,1)^(d>>1, d&1): d=1:(1,0) ; d=2:(0,1) ; d=3:(0,0)")
e(f"v_lshlrev_b32 v{vT[3]}, 4, v{vLANE}")
for d in (1, 2, 3):
    e(f"s_xor_b32 s{sTMP}, s{sWV}, {d}")
    e(f"s_mul_i32 s{sTMP}, s{sTMP}, {LDS_W}")
    e(f"v_add_u32 v{vT[4+d]}, s{sTMP}, v{vT[3]}")
O = vF
for j in range(8):
    e(f"v_accvgpr_read_b32 v{O+2*j}, a{acc2(1,j)+2}")
    e(f"v_accvgpr_read_b32 v{O+2*j+1}, a{acc2(1,j)+3}")
e("s_waitcnt lgkmcnt(0)")
e("s_barrier")
offs = {1: 8192, 2: 8, 3: 0}
for d in (1, 2, 3):
    for j in range(8):
        r = O + 16*d + 2*j
        e(f"ds_read_b64 v[{r}:{r+1}], v{vT[4+d]} offset:{offs[d] + j*1024}")
    if d == 2: pass
for d in (1, 2, 3):
    e(f"s_waitcnt lgkmcnt({min(15, 24 - 8*d)})")
    for j in range(8):
        e(f"v_pk_add_f32 v[{O+2*j}:{O+2*j+1}], v[{O+2*j}:{O+2*j+1}], v[{O+16*d+2*j}:{O+16*d+2*j+1}]")
P = vTT
for rr in range(2):
    for d in range(4):
        e(f"v_cvt_pk_bf16_f32 v{P+rr*4+d}, v{O + 4*d + rr}, v{O + 4*d + 2 + rr}")
    e(f"buffer_store_dwordx4 v[{P+rr*4}:{P+rr*4+3}], v{vOUT}, s[{SOUT}:{SOUT+3}], 0 offen offset:{rr*1024}")
if STAMPS:
    e("s_waitcnt vmcnt(0)")
    stamp()
    e("s_memrealtime s[78:79]")
    e("s_getreg_b32 s75, hwreg(HW_REG_XCC_ID)")
    e("s_waitcnt lgkmcnt(0)")
    n = nst[0]
    assert n <= 11
    e(f"v_mov_b32 v{vF}, s76"); e(f"v_mov_b32 v{vF+1}, s78"); e(f"v_mov_b32 v{vF+2}, s75"); e(f"v_mov_b32 v{vF+3}, s2")
    for i in range(1, n):
        e(f"s_sub_u32 s{sST+2*i}, s{sST+2*i}, s{sST}")
        e(f"v_mov_b32 v{vF+3+i}, s{sST+2*i}")
    e(f"s_lshl_b32 s{sTMP}, s2, 2"); e(f"s_add_u32 s{sTMP}, s{sTMP}, s{sWV}"); e(f"s_lshl_b32 s{sTMP}, s{sTMP}, 6"); e(f"s_add_u32 s{sTMP}, s{sTMP}, 0x8000000")
    e(f"v_mov_b32 v{vT[0]}, 0")
    e("s_mov_b64 exec, 1")
    for i in range(4):
        e(f"buffer_store_dwordx4 v[{vF+4*i}:{vF+4*i+3}], v{vT[0]}, s[{SZ}:{SZ+3}], s{sTMP} offen offset:{16*i}")
lab("L_end")
e("s_endpgm")
out.append('.section .rodata,"a"'); out.append(".p2align 6"); out.append(f".amdhsa_kernel {name}")
for l in [".amdhsa_next_free_vgpr 512", ".amdhsa_next_free_sgpr 102", ".amdhsa_accum_offset 256", ".amdhsa_group_segment_fixed_size 0", ".amdhsa_kernarg_size 48", ".amdhsa_user_sgpr_count 2", ".amdhsa_user_sgpr_kernarg_segment_ptr 1", ".amdhsa_system_sgpr_workgroup_id_x 1"]:
    out.append("  " + l)
out.append(".end_amdhsa_kernel")
print("\n".join(out))
```

```python
import sys, argparse
ap = argparse.ArgumentParser()
ap.add_argument("--stamps", type=int, default=0)
ap.add_argument("--rot", type=int, default=1)
ap.add_argument("--name", default="standalone__autoregressive_conv_wavenet__speech_kernel")
args = ap.parse_args()
STAMPS = args.stamps
name = args.name
out = []
def e(s): out.append("    " + s)
def lab(s): out.append(s + ":")
def cm(s): out.append("    ; " + s)

LDS_W = 40960
R2 = 24576
LDS_TOTAL = 4 * LDS_W
XHALF = 9216

hdr = """; Kernarg layout for this problem (48 bytes, ptrs only, base s[0:1]):
"""
out.append(hdr + f"; @launch grid=(256,1,1) block=(256,1,1) lds={LDS_TOTAL}")
out.append('.amdgcn_target "amdgcn-amd-amdhsa--gfx950"')
out.append(".text"); out.append(f".globl {name}"); out.append(".p2align 8"); out.append(f".type {name},@function"); lab(name)

SX, SW, SWO, SOUT, SDBG, SZ = 16, 20, 24, 28, 32, 36
sMT, sNT, sWV, sT0, sTMP, sTMP2, sLB = 40, 41, 42, 43, 44, 45, 46
sSELLO, sSELHI = 47, 48
sGOFF = 50
sBOFF = 62
sH0, sR6 = 66, 67
sC1, sC2, sMASK = 68, 69, 70
sEOFF, sTAG, s8K = 32, 33, 34
EPOCH_BASE = 0x400000
FLAG_BASE = 0x500000
vEP = 31
sLD = 71
sST = 80
vLANE = 1
vT = [2, 3, 4, 5, 6, 7, 8, 9]
vXA = 10
vW, vWO, vZL, vZS, vOUT, vRW, vX0, vXO, vXE = 22, 23, 24, 25, 26, 27, 28, 29, 30
vR = 32
vF = 160
vTT = 224
aXF = 128
aACC2 = 160

nst = [0]
def stamp():
    if STAMPS:
        i = nst[0]; nst[0] += 1
        e(f"s_memtime s[{sST+2*i}:{sST+2*i+1}]")

def srd(base, lo, hi, nbytes):
    e(f"s_mov_b32 s{base}, s{lo}"); e(f"s_mov_b32 s{base+1}, s{hi}")
    e(f"s_mov_b32 s{base+2}, {nbytes}"); e(f"s_mov_b32 s{base+3}, 0x20000")

if STAMPS: e("s_memrealtime s[76:77]")
stamp()
e("s_load_dwordx4 s[4:7], s[0:1], 0")
e("s_load_dwordx4 s[8:11], s[0:1], 16")
e("s_load_dwordx4 s[12:15], s[0:1], 32")
e("s_cmp_ge_u32 s2, 256")
e("s_cbranch_scc1 L_end")
cm("tile mapping: xcd = wg&7, idx = wg>>3 ; batch = xcd&1 ; mti = idx&15 ; nt = (xcd>>1)*2 + (idx>>4)")
e(f"s_lshr_b32 s{sTMP}, s2, 3")
e(f"s_and_b32 s{sT0}, s{sTMP}, 15")
e(f"s_and_b32 s3, s2, 1")
e(f"s_lshl_b32 s{sMT}, s3, 4")
e(f"s_add_u32 s{sMT}, s{sMT}, s{sT0}")
e(f"s_and_b32 s{sNT}, s2, 6")
e(f"s_lshr_b32 s{sTMP2}, s{sTMP}, 4")
e(f"s_add_u32 s{sNT}, s{sNT}, s{sTMP2}")
cm("rotation: 12 starting points from mti: rot = mti mod 12 ; h0 = rot/6 ; r6 = rot%6")
if args.rot:
    e(f"s_cmp_ge_u32 s{sT0}, 12")
    e(f"s_cselect_b32 s{sTMP2}, 9, 0")
    e(f"s_sub_u32 s{sR6}, s{sT0}, s{sTMP2}")
    e(f"s_cmp_ge_u32 s{sR6}, 6")
    e(f"s_cselect_b32 s{sH0}, 1, 0")
    e(f"s_cselect_b32 s{sTMP2}, 6, 0")
    e(f"s_sub_u32 s{sR6}, s{sR6}, s{sTMP2}")
else:
    e(f"s_mov_b32 s{sH0}, 0"); e(f"s_mov_b32 s{sR6}, 0")
e(f"s_lshl_b32 s{sT0}, s{sT0}, 6")
e(f"v_lshrrev_b32 v{vT[0]}, 6, v0")
e(f"v_and_b32 v{vLANE}, 63, v0")
e(f"s_mov_b32 s{sSELLO}, 0x05040100")
e(f"v_readfirstlane_b32 s{sWV}, v{vT[0]}")
e(f"s_mov_b32 s{sSELHI}, 0x07060302")
cm("x DMA voffsets. lane: row = l>>3, cpos = l&7 ; src chunk = cpos ^ ((4i + (l>>4))&7)")
e(f"v_lshrrev_b32 v{vT[1]}, 4, v{vLANE}")
e(f"v_and_b32 v{vT[2]}, 7, v{vLANE}")
e(f"v_xor_b32 v{vT[2]}, v{vT[2]}, v{vT[1]}")
e(f"v_lshlrev_b32 v{vT[2]}, 4, v{vT[2]}")
e(f"v_lshrrev_b32 v{vT[3]}, 3, v{vLANE}")
e(f"v_lshlrev_b32 v{vT[3]}, 10, v{vT[3]}")
e(f"v_add_u32 v{vT[2]}, v{vT[2]}, v{vT[3]}")
e(f"s_lshl_b32 s{sTMP}, s{sWV}, 8")
e(f"s_lshl_b32 s{sTMP2}, s{sT0}, 10")
e(f"s_add_u32 s{sTMP}, s{sTMP}, s{sTMP2}")
e(f"s_sub_u32 s{sTMP2}, s{sTMP}, 4096")
e(f"v_add_u32 v{vX0}, s{sTMP2}, v{vT[2]}")
e(f"s_add_u32 s{sTMP2}, s{sTMP}, 4096")
e(f"v_add_u32 v{vXE}, s{sTMP2}, v{vT[2]}")
e(f"v_xor_b32 v{vXO}, 64, v{vXE}")
cm("w voffset: p=l&15: ((p>>2)&1)*1024 + (p>>3)*64 + (p&3)*16 + nt*128 + (128*wave + 8*kgrp)*2048")
e(f"v_and_b32 v{vT[4]}, 15, v{vLANE}")
e(f"v_lshrrev_b32 v{vT[2]}, 3, v{vT[4]}")
e(f"v_lshlrev_b32 v{vT[2]}, 6, v{vT[2]}")
e(f"v_and_b32 v{vT[3]}, 3, v{vT[4]}")
e(f"v_lshlrev_b32 v{vT[3]}, 4, v{vT[3]}")
e(f"v_add_u32 v{vT[2]}, v{vT[2]}, v{vT[3]}")
e(f"v_and_b32 v{vT[3]}, 4, v{vT[4]}")
e(f"v_lshlrev_b32 v{vT[3]}, 8, v{vT[3]}")
e(f"v_add_u32 v{vT[2]}, v{vT[2]}, v{vT[3]}")
e(f"v_lshlrev_b32 v{vT[3]}, 14, v{vT[1]}")
e(f"v_add_u32 v{vT[2]}, v{vT[2]}, v{vT[3]}")
e(f"s_lshl_b32 s{sTMP}, s{sWV}, 18")
e(f"s_lshl_b32 s{sTMP2}, s{sNT}, 7")
e(f"s_add_u32 s{sTMP}, s{sTMP}, s{sTMP2}")
e(f"v_add_u32 v{vW}, s{sTMP}, v{vT[2]}")
cm("slot -> group offsets (sGOFF[u]); slot u<6: half h0 ; idx6 = (u+r6) mod 6 ; tap = idx6>>1 ; s = 2*half + (idx6&1)")
for u in range(6):
    e(f"s_add_u32 s{sTMP}, s{sR6}, {u}")
    e(f"s_cmp_ge_u32 s{sTMP}, 6")
    e(f"s_cselect_b32 s{sTMP2}, 6, 0")
    e(f"s_sub_u32 s{sTMP}, s{sTMP}, s{sTMP2}")
    e(f"s_lshr_b32 s{sTMP2}, s{sTMP}, 1")
    e(f"s_lshl_b32 s{sTMP2}, s{sTMP2}, 20")
    e(f"s_and_b32 s{sTMP}, s{sTMP}, 1")
    e(f"s_lshl_b32 s{sTMP}, s{sTMP}, 16")
    e(f"s_or_b32 s{sGOFF+u}, s{sTMP}, s{sTMP2}")
e(f"s_lshl_b32 s{sTMP}, s{sH0}, 17")
for u in range(6):
    e(f"s_or_b32 s{sGOFF+u}, s{sGOFF+u}, s{sTMP}")
    e(f"s_xor_b32 s{sGOFF+6+u}, s{sGOFF+u}, 0x20000")
e(f"s_mul_i32 s{sLB}, s{sWV}, {LDS_W}")
e("s_waitcnt lgkmcnt(0)")
stamp()
cm("SRDs (x and out per batch)")
e(f"s_mul_i32 s{sTMP}, s3, 1024000")
e(f"s_add_u32 s{SX}, s4, s{sTMP}"); e(f"s_addc_u32 s{SX+1}, s5, 0"); e(f"s_mov_b32 s{SX+2}, 1024000"); e(f"s_mov_b32 s{SX+3}, 0x20000")
srd(SW, 6, 7, 3145728)

ldn = [0]
def ldtmp():
    r = sLD + (ldn[0] % 4); ldn[0] += 1
    return r

def x_dma(second):
    e(f"s_xor_b32 s{sTMP}, s{sH0}, {second}")
    e(f"s_lshl_b32 s{sTMP}, s{sTMP}, 7")
    for i in range(9):
        e(f"s_add_u32 m0, s{sLB}, {second*XHALF + i*1024}")
        if i == 0:
            e("s_nop 0")
            e(f"buffer_load_dwordx4 v{vX0}, s[{SX}:{SX+3}], s{sTMP} offen lds")
        else:
            r = ldtmp()
            e(f"s_add_u32 s{r}, s{sTMP}, {(i-1)*8192}")
            if i == 8: e("s_mov_b64 exec, 0xffffffff")
            e(f"buffer_load_dwordx4 v{vXO if i & 1 else vXE}, s[{SX}:{SX+3}], s{r} offen lds")
            if i == 8: e("s_mov_b64 exec, -1")

def w_load_instrs(u):
    L = []
    base = vR + (u % 4) * 32
    for jj in range(8):
        r = base + jj * 4
        ins = []
        if u < 12:
            if jj % 2 == 0:
                t = ldtmp()
                ins.append(f"s_add_u32 s{t}, s{sGOFF+u}, {jj*2048}")
            ins.append(f"buffer_load_dwordx4 v[{r}:{r+3}], v{vW}, s[{SW}:{SW+3}], s{t} offen" + (" offset:2048" if jj % 2 else ""))
        else:
            s2 = u - 12
            if jj % 4 == 0:
                t = ldtmp()
                ins.append(f"s_mov_b32 s{t}, {((s2>>1)*64 + (s2&1)*8 + jj)*1024}")
            ins.append(f"buffer_load_dwordx4 v[{r}:{r+3}], v{vWO}, s[{SWO}:{SWO+3}], s{t} offen" + (f" offset:{(jj%4)*1024}" if jj % 4 else ""))
        L.append(ins)
    return L

def perm_instrs(src, dst, kp):
    L = []
    for d in range(4):
        a = src + (2*kp) * 4 + d; b = src + (2*kp+1) * 4 + d
        L.append(f"v_perm_b32 v{dst + (2*d)*4 + kp}, v{b}, v{a}, s{sSELLO}")
        L.append(f"v_perm_b32 v{dst + (2*d+1)*4 + kp}, v{b}, v{a}, s{sSELHI}")
    return L

srd(SZ, 14, 15, 0x10000000)
e(f"s_lshl_b32 s{sTMP}, s{sMT}, 7")
e(f"s_add_u32 s{sEOFF}, s{sTMP}, {EPOCH_BASE}")
e(f"v_mov_b32 v{vT[0]}, 0")
e(f"buffer_load_dword v{vEP}, v{vT[0]}, s[{SZ}:{SZ+3}], s{sEOFF} offen sc1")
x_dma(0)
for u in range(3):
    for ins in w_load_instrs(u):
        for i in ins: e(i)
x_dma(1)
for ins in w_load_instrs(3):
    for i in ins: e(i)
stamp()
cm("remaining SRDs and addresses (while loads fly)")
srd(SWO, 8, 9, 524288)
e(f"s_mul_i32 s{sTMP}, s3, 1024000")
e(f"s_add_u32 s{SOUT}, s10, s{sTMP}"); e(f"s_addc_u32 s{SOUT+1}, s11, 0"); e(f"s_mov_b32 s{SOUT+2}, 1024000"); e(f"s_mov_b32 s{SOUT+3}, 0x20000")
cm("block offsets: static beta -> actual b = (beta + wave + 1)&3 ; byte off = b*16*128")
for b in range(4):
    e(f"s_add_u32 s{sTMP}, s{sWV}, {b+1}")
    e(f"s_and_b32 s{sTMP}, s{sTMP}, 3")
    e(f"s_lshl_b32 s{sBOFF+b}, s{sTMP}, 11")
cm("x frag LDS addresses per slot: rho = m + 4 - 2*tap ; addr = LB + region*XHALF + rho*128 + (((4*(s&1)+kgrp) ^ ((rho>>1)&7))<<4)")
for u in range(6):
    e(f"s_lshr_b32 s{sTMP}, s{sGOFF+u}, 20")
    e(f"s_lshl_b32 s{sTMP}, s{sTMP}, 1")
    e(f"s_sub_u32 s{sTMP}, 4, s{sTMP}")
    e(f"v_add_u32 v{vT[2]}, s{sTMP}, v{vT[4]}")
    e(f"s_lshr_b32 s{sTMP2}, s{sGOFF+u}, 14")
    e(f"s_and_b32 s{sTMP2}, s{sTMP2}, 4")
    e(f"v_bfe_u32 v{vT[3]}, v{vT[2]}, 1, 3")
    e(f"v_xor_b32 v{vT[3]}, v{vT[3]}, v{vT[1]}")
    e(f"v_xor_b32 v{vT[3]}, s{sTMP2}, v{vT[3]}")
    e(f"v_lshlrev_b32 v{vT[3]}, 4, v{vT[3]}")
    e(f"v_lshl_add_u32 v{vT[3]}, v{vT[2]}, 7, v{vT[3]}")
    e(f"v_add_u32 v{vXA+u}, s{sLB}, v{vT[3]}")
    e(f"v_add_u32 v{vXA+6+u}, {XHALF}, v{vXA+u}")
cm("w_o voffset: (128*wave + 8*kgrp)*1024 + (nt>>1)*256 + p*16")
e(f"v_lshlrev_b32 v{vT[2]}, 14, v{vT[1]}")
e(f"v_lshl_add_u32 v{vT[2]}, v{vT[4]}, 4, v{vT[2]}")
e(f"s_lshl_b32 s{sTMP}, s{sWV}, 17")
e(f"s_lshr_b32 s{sTMP2}, s{sNT}, 1")
e(f"s_lshl_b32 s{sTMP2}, s{sTMP2}, 8")
e(f"s_add_u32 s{sTMP}, s{sTMP}, s{sTMP2}")
e(f"v_add_u32 v{vWO}, s{sTMP}, v{vT[2]}")
cm("z store voffset: mt*65536 + nt*8192 + wave*2048 + lane*16 (+ r*1024)")
e(f"v_lshlrev_b32 v{vT[2]}, 4, v{vLANE}")
e(f"s_lshl_b32 s{sTMP}, s{sMT}, 16")
e(f"s_lshl_b32 s{sTMP2}, s{sWV}, 11")
e(f"s_add_u32 s{sTMP}, s{sTMP}, s{sTMP2}")
e(f"s_lshl_b32 s{sTMP2}, s{sNT}, 13")
e(f"s_add_u32 s{sTMP}, s{sTMP}, s{sTMP2}")
e(f"v_add_u32 v{vZS}, s{sTMP}, v{vT[2]}")
cm("z load voffset: mt*65536 + wave*16384 + (2*(nt&1) + (betab^cb))*2048 + (lane ^ 2cr)*16  (+ a*8192 + r*1024)")
e(f"s_lshr_b32 s{sTMP}, s{sWV}, 1")
e(f"s_lshl_b32 s{sTMP}, s{sTMP}, 4")
e(f"s_and_b32 s{sTMP2}, s{sWV}, 1")
e(f"s_lshl_b32 s{sTMP2}, s{sTMP2}, 1")
e(f"s_or_b32 s{sC1}, s{sTMP}, s{sTMP2}")
e(f"v_xor_b32 v{vT[2]}, s{sTMP2}, v{vLANE}")
e(f"v_lshlrev_b32 v{vT[2]}, 4, v{vT[2]}")
e(f"s_lshl_b32 s{sTMP}, s{sTMP}, 7")
e(f"s_lshl_b32 s{sTMP2}, s{sMT}, 16")
e(f"s_add_u32 s{sTMP}, s{sTMP}, s{sTMP2}")
e(f"s_and_b32 s{sTMP2}, s{sNT}, 1")
e(f"s_lshl_b32 s{sTMP2}, s{sTMP2}, 12")
e(f"s_add_u32 s{sTMP}, s{sTMP}, s{sTMP2}")
e(f"s_lshl_b32 s{sTMP2}, s{sWV}, 14")
e(f"s_add_u32 s{sTMP}, s{sTMP}, s{sTMP2}")
e(f"v_add_u32 v{vZL}, s{sTMP}, v{vT[2]}")
e(f"s_mov_b32 s{s8K}, 8192")
cm("out voffset: own static unit (betab=1, rp=1): static row 16+4q+2+{0,1} ^ C1 ; bytes = (t0 + 32*(nt&1) + row)*1024 + (nt>>1)*256 + p*16")
e(f"v_lshlrev_b32 v{vT[2]}, 2, v{vT[1]}")
e(f"v_add_u32 v{vT[2]}, 18, v{vT[2]}")
e(f"v_xor_b32 v{vT[2]}, s{sC1}, v{vT[2]}")
e(f"v_lshlrev_b32 v{vT[2]}, 10, v{vT[2]}")
e(f"v_lshl_add_u32 v{vT[2]}, v{vT[4]}, 4, v{vT[2]}")
e(f"s_and_b32 s{sTMP2}, s{sNT}, 1")
e(f"s_lshl_b32 s{sTMP2}, s{sTMP2}, 5")
e(f"s_add_u32 s{sTMP}, s{sT0}, s{sTMP2}")
e(f"s_lshl_b32 s{sTMP}, s{sTMP}, 10")
e(f"s_lshr_b32 s{sTMP2}, s{sNT}, 1")
e(f"s_lshl_b32 s{sTMP2}, s{sTMP2}, 8")
e(f"s_add_u32 s{sTMP}, s{sTMP}, s{sTMP2}")
e(f"v_add_u32 v{vOUT}, s{sTMP}, v{vT[2]}")
cm("reduction write addr = LB + lane*16")
e(f"v_lshlrev_b32 v{vT[2]}, 4, v{vLANE}")
e(f"v_add_u32 v{vRW}, s{sLB}, v{vT[2]}")

def xread_instrs(u):
    L = []
    for b in range(4):
        t = vT[4 + b]
        L.append([f"v_add_u32 v{vTT+b}, s{sBOFF+b}, v{vXA+u}",
                  f"ds_read_b128 a[{aXF + (u%2)*16 + b*4}:{aXF + (u%2)*16 + b*4 + 3}], v{vTT+b}"])
    return L

cm("wait x half0 + G0 ; outstanding younger: G1 G2 Xh1 G3 = 33")
e("s_waitcnt vmcnt(41)")
for ins in xread_instrs(0):
    for i in ins: e(i)
for kp in range(4):
    e(f"s_waitcnt vmcnt({33 + 6 - 2*kp})")
    for i in perm_instrs(vR, vF, kp): e(i)
stamp()

def acc(b, j): return (b * 8 + j) * 4

for u in range(12):
    cm(f"---- slot {u}")
    F = vF + (u % 2) * 32
    XF = aXF + (u % 2) * 16
    mf = []
    for b in range(4):
        for j in range(8):
            c = "0" if u == 0 else f"a[{acc(b,j)}:{acc(b,j)+3}]"
            mf.append(f"v_mfma_f32_16x16x32_bf16 a[{acc(b,j)}:{acc(b,j)+3}], v[{F+4*j}:{F+4*j+3}], a[{XF+4*b}:{XF+4*b+3}], {c}")
    fill = [[] for _ in range(32)]
    lds = w_load_instrs(u + 4)
    for i, ins in enumerate(lds): fill[2*i] += ins
    if u < 11:
        for i, ins in enumerate(xread_instrs(u + 1)): fill[2*i + 1] += ins
        extra = 9 if u in (0, 1) else 0
        for kp in range(4):
            p = perm_instrs(vR + ((u+1) % 4) * 32, vF + ((u+1) % 2) * 32, kp)
            fill[15 + 4*kp].append(f"s_waitcnt vmcnt({24 + extra + 6 - 2*kp})")
            for i in range(4):
                fill[16 + 4*kp + i] += p[2*i:2*i+2]
    if u == 11:
        for b in range(3):
            for j in range(8):
                fill[b*8 + j + 8].append(f"ds_write_b128 v{vRW}, a[{acc(b,j)}:{acc(b,j)+3}] offset:{b*8192 + j*1024}")
    e("s_waitcnt lgkmcnt(0)")
    if u == 0: e("s_nop 1")
    for i in range(32):
        e(mf[i])
        for ins in fill[i]: e(ins)
stamp()
cm("---- reduction 1")
cm("read addresses: beta -> src = (wave - 1 - beta)&3")
e(f"v_lshlrev_b32 v{vT[2]}, 4, v{vLANE}")
for b in range(3):
    e(f"s_sub_u32 s{sTMP}, s{sWV}, {b+1}")
    e(f"s_and_b32 s{sTMP}, s{sTMP}, 3")
    e(f"s_mul_i32 s{sTMP}, s{sTMP}, {LDS_W}")
    e(f"v_add_u32 v{vT[5+b]}, s{sTMP}, v{vT[2]}")
for i in range(32):
    e(f"v_accvgpr_read_b32 v{vF+i}, a{acc(3,0)+i}")
e("s_waitcnt lgkmcnt(0)")
e("s_barrier")
for j in range(8): e(f"ds_read_b128 v[{vF+32+4*j}:{vF+32+4*j+3}], v{vT[5]} offset:{j*1024}")
for j in range(8): e(f"ds_read_b128 v[{vTT+4*j}:{vTT+4*j+3}], v{vT[6]} offset:{8192 + j*1024}")
e("s_waitcnt lgkmcnt(8)")
for i in range(0, 32, 2): e(f"v_pk_add_f32 v[{vF+i}:{vF+i+1}], v[{vF+i}:{vF+i+1}], v[{vF+32+i}:{vF+32+i+1}]")
for j in range(8): e(f"ds_read_b128 v[{vF+32+4*j}:{vF+32+4*j+3}], v{vT[7]} offset:{16384 + j*1024}")
e("s_waitcnt lgkmcnt(8)")
for i in range(0, 32, 2): e(f"v_pk_add_f32 v[{vF+i}:{vF+i+1}], v[{vF+i}:{vF+i+1}], v[{vTT+i}:{vTT+i+1}]")
e("s_waitcnt lgkmcnt(0)")
for i in range(0, 32, 2): e(f"v_pk_add_f32 v[{vF+i}:{vF+i+1}], v[{vF+i}:{vF+i+1}], v[{vF+32+i}:{vF+32+i+1}]")
stamp()
e("s_nop 1")
for j in range(8):
    e(f"v_permlane16_swap_b32 v{vF+4*j}, v{vF+4*j+2}")
    e(f"v_permlane16_swap_b32 v{vF+4*j+1}, v{vF+4*j+3}")
cm("---- gating: h[j][r] in vF+4j+r ; f: r=0,1 ; g: r=2,3")
e(f"s_mov_b32 s{sTMP}, 0xc038aa3b")
e(f"s_mov_b32 s{sTMP2}, 0xbfb8aa3b")
e(f"s_mov_b32 s{sMASK}, 0x7fffffff")
Z = vTT
def gate(elems):
    T = [vF + 32 + 4*i for i in range(len(elems))]
    for (f, g, z), t in zip(elems, T): e(f"v_mul_f32 v{t}, s{sTMP}, |v{f}|")
    for (f, g, z), t in zip(elems, T): e(f"v_mul_f32 v{t+1}, s{sTMP2}, v{g}")
    for (f, g, z), t in zip(elems, T): e(f"v_exp_f32 v{t}, v{t}")
    for (f, g, z), t in zip(elems, T): e(f"v_exp_f32 v{t+1}, v{t+1}")
    for (f, g, z), t in zip(elems, T): e(f"v_fma_f32 v{t+2}, -v{f}, v{f}, |v{f}|")
    for (f, g, z), t in zip(elems, T): e(f"v_fma_f32 v{t+3}, v{t}, 0.5, 0.5")
    for (f, g, z), t in zip(elems, T): e(f"v_fma_f32 v{t}, v{t}, -0.5, 0.5")
    for (f, g, z), t in zip(elems, T): e(f"v_fma_f32 v{t+3}, v{t+3}, v{t+1}, v{t+3}")
    for (f, g, z), t in zip(elems, T): e(f"v_rcp_f32 v{t+3}, v{t+3}")
    for (f, g, z), t in zip(elems, T): e(f"v_med3_f32 v{t}, v{t}, v{t+2}, |v{f}|")
    for (f, g, z), t in zip(elems, T): e(f"v_bfi_b32 v{t}, s{sMASK}, v{t}, v{f}")
    for (f, g, z), t in zip(elems, T): e(f"v_mul_f32 v{z}, v{t}, v{t+3}")
for r in range(2):
    gate([(vF + 4*j + r, vF + 4*j + r + 2, Z + r*8 + j) for j in range(8)])
    P = Z + 16 + r*4
    for d in range(4):
        e(f"v_cvt_pk_bf16_f32 v{P+d}, v{Z + r*8 + 2*d}, v{Z + r*8 + 2*d + 1}")
    e(f"buffer_store_dwordx4 v[{P}:{P+3}], v{vZS}, s[{SZ}:{SZ+3}], 0 offen offset:{r*1024} sc1")
stamp()
cm("tag = epoch+1 ; flag address = FLAG_BASE + ((mt*8+nt)*4+wave)*128")
e(f"v_add_u32 v{vEP}, 1, v{vEP}")
e(f"s_lshl_b32 s{sTMP}, s{sMT}, 12")
e(f"s_add_u32 s{sC2}, s{sTMP}, {FLAG_BASE}")
e(f"s_lshl_b32 s{sTMP}, s{sNT}, 9")
e(f"s_add_u32 s{sTMP}, s{sTMP}, s{sC2}")
e(f"s_lshl_b32 s{sTMP2}, s{sWV}, 7")
e(f"s_add_u32 s{sTMP}, s{sTMP}, s{sTMP2}")
e(f"v_mov_b32 v{vT[0]}, 0")
cm("poll lanes 0..3: producer nt' = 2*wave + (l>>1), wave' = 2*(nt&1) + (l&1)")
e(f"v_lshrrev_b32 v{vT[1]}, 1, v{vLANE}")
e(f"v_lshlrev_b32 v{vT[1]}, 9, v{vT[1]}")
e(f"v_and_b32 v{vT[3]}, 1, v{vLANE}")
e(f"v_lshl_add_u32 v{vT[1]}, v{vT[3]}, 7, v{vT[1]}")
e(f"s_lshl_b32 s{sTMP2}, s{sWV}, 10")
e(f"s_add_u32 s{sC2}, s{sC2}, s{sTMP2}")
e(f"s_and_b32 s{sTMP2}, s{sNT}, 1")
e(f"s_lshl_b32 s{sTMP2}, s{sTMP2}, 8")
e(f"s_add_u32 s{sC2}, s{sC2}, s{sTMP2}")
e(f"v_xor_b32 v{vT[2]}, 0x800, v{vZL}")
FO = [vF, vF + 32, vTT, vR]
cm("perm w_o: R0->F0, R1->F1 (while z stores drain)")
e("s_waitcnt vmcnt(18)")
for s2 in range(2):
    for kp in range(4):
        for i in perm_instrs(vR + s2*32, FO[s2], kp): e(i)
e("s_waitcnt vmcnt(0)")
stamp()
e("s_mov_b64 exec, 1")
e(f"buffer_store_dword v{vEP}, v{vT[0]}, s[{SZ}:{SZ+3}], s{sTMP} offen sc1")
e("s_mov_b64 exec, -1")
for s2 in range(2, 4):
    for kp in range(4):
        for i in perm_instrs(vR + s2*32, FO[s2], kp): e(i)
e(f"s_mov_b32 s{sTMP}, 0")
e("s_mov_b64 exec, 15")
lab("L_poll")
e(f"buffer_load_dword v{vT[3]}, v{vT[1]}, s[{SZ}:{SZ+3}], s{sC2} offen sc1")
e("s_waitcnt vmcnt(0)")
e(f"v_cmp_eq_u32 vcc, v{vT[3]}, v{vEP}")
e("s_nop 1")
e("s_cmp_eq_u64 vcc, exec")
e("s_cbranch_scc1 L_go")
e("s_sleep 1")
e(f"s_add_u32 s{sTMP}, s{sTMP}, 1")
e(f"s_cmp_lt_u32 s{sTMP}, 20000")
e("s_cbranch_scc1 L_poll")
lab("L_go")
e("s_mov_b64 exec, -1")
stamp()
ZF = vR + 32
for s2 in range(4):
    for bb in range(2):
        r = ZF + (s2*2 + bb) * 4
        so = ("s%d" % s8K) if s2 >= 2 else "0"
        e(f"buffer_load_dwordx4 v[{r}:{r+3}], v{vZL if bb == 0 else vT[2]}, s[{SZ}:{SZ+3}], {so} offen offset:{(s2&1)*1024} sc1")
def acc2(b, j): return aACC2 + (b*8 + j) * 4
for s2 in range(4):
    for bb in range(2):
        e(f"s_waitcnt vmcnt({7 - (s2*2 + bb)})")
        r = ZF + (s2*2 + bb) * 4
        for j in range(8):
            c = "0" if s2 == 0 else f"a[{acc2(bb,j)}:{acc2(bb,j)+3}]"
            e(f"v_mfma_f32_16x16x32_bf16 a[{acc2(bb,j)}:{acc2(bb,j)+3}], v[{r}:{r+3}], v[{FO[s2]+4*j}:{FO[s2]+4*j+3}], {c}")
stamp()
cm("---- reduction 2. region per wave: [0,8K): betab=0 b128 ; [8K,12K+): betab=1 rp=0 as b64 stored at lane*16 (low half)")
e("s_nop 7")
for j in range(8):
    e(f"ds_write_b128 v{vRW}, a[{acc2(0,j)}:{acc2(0,j)+3}] offset:{R2 + j*1024}")
for j in range(8):
    e(f"ds_write_b64 v{vRW}, a[{acc2(1,j)}:{acc2(1,j)+1}] offset:{R2 + 8192 + j*1024}")
cm("owner o reads from src = o^d (d=1,2,3): static unit in src = (1,1)^(d>>1, d&1): d=1:(1,0) ; d=2:(0,1) ; d=3:(0,0)")
e(f"v_lshlrev_b32 v{vT[3]}, 4, v{vLANE}")
for d in (1, 2, 3):
    e(f"s_xor_b32 s{sTMP}, s{sWV}, {d}")
    e(f"s_mul_i32 s{sTMP}, s{sTMP}, {LDS_W}")
    e(f"v_add_u32 v{vT[4+d]}, s{sTMP}, v{vT[3]}")
O = vF
for j in range(8):
    e(f"v_accvgpr_read_b32 v{O+2*j}, a{acc2(1,j)+2}")
    e(f"v_accvgpr_read_b32 v{O+2*j+1}, a{acc2(1,j)+3}")
e("s_waitcnt lgkmcnt(0)")
e("s_barrier")
offs = {1: R2 + 8192, 2: R2 + 8, 3: R2}
for d in (1, 2, 3):
    for j in range(8):
        r = O + 16*d + 2*j
        e(f"ds_read_b64 v[{r}:{r+1}], v{vT[4+d]} offset:{offs[d] + j*1024}")
    if d == 2: pass
for d in (1, 2, 3):
    e(f"s_waitcnt lgkmcnt({min(15, 24 - 8*d)})")
    for j in range(8):
        e(f"v_pk_add_f32 v[{O+2*j}:{O+2*j+1}], v[{O+2*j}:{O+2*j+1}], v[{O+16*d+2*j}:{O+16*d+2*j+1}]")
e(f"s_or_b32 s{sTMP}, s{sNT}, s{sWV}")
e(f"s_cmp_lg_u32 s{sTMP}, 0")
e("s_cbranch_scc1 L_noep")
e("s_mov_b64 exec, 1")
e(f"buffer_store_dword v{vEP}, v{vT[0]}, s[{SZ}:{SZ+3}], s{sEOFF} offen sc1")
e("s_mov_b64 exec, -1")
lab("L_noep")
P = vTT
for rr in range(2):
    for d in range(4):
        e(f"v_cvt_pk_bf16_f32 v{P+rr*4+d}, v{O + 4*d + rr}, v{O + 4*d + 2 + rr}")
    e(f"buffer_store_dwordx4 v[{P+rr*4}:{P+rr*4+3}], v{vOUT}, s[{SOUT}:{SOUT+3}], 0 offen offset:{rr*1024}")
if STAMPS:
    e("s_waitcnt vmcnt(0)")
    stamp()
    e("s_memrealtime s[78:79]")
    e("s_getreg_b32 s75, hwreg(HW_REG_XCC_ID)")
    e("s_waitcnt lgkmcnt(0)")
    n = nst[0]
    assert n <= 11
    e(f"v_mov_b32 v{vF}, s76"); e(f"v_mov_b32 v{vF+1}, s78"); e(f"v_mov_b32 v{vF+2}, s75"); e(f"v_mov_b32 v{vF+3}, s2")
    for i in range(1, n):
        e(f"s_sub_u32 s{sST+2*i}, s{sST+2*i}, s{sST}")
        e(f"v_mov_b32 v{vF+3+i}, s{sST+2*i}")
    e(f"s_lshl_b32 s{sTMP}, s2, 2"); e(f"s_add_u32 s{sTMP}, s{sTMP}, s{sWV}"); e(f"s_lshl_b32 s{sTMP}, s{sTMP}, 6"); e(f"s_add_u32 s{sTMP}, s{sTMP}, 0x8000000")
    e(f"v_mov_b32 v{vT[0]}, 0")
    e("s_mov_b64 exec, 1")
    for i in range(4):
        e(f"buffer_store_dwordx4 v[{vF+4*i}:{vF+4*i+3}], v{vT[0]}, s[{SZ}:{SZ+3}], s{sTMP} offen offset:{16*i}")
lab("L_end")
e("s_endpgm")
out.append('.section .rodata,"a"'); out.append(".p2align 6"); out.append(f".amdhsa_kernel {name}")
for l in [".amdhsa_next_free_vgpr 512", ".amdhsa_next_free_sgpr 102", ".amdhsa_accum_offset 256", ".amdhsa_group_segment_fixed_size 0", ".amdhsa_kernarg_size 48", ".amdhsa_user_sgpr_count 2", ".amdhsa_user_sgpr_kernarg_segment_ptr 1", ".amdhsa_system_sgpr_workgroup_id_x 1"]:
    out.append("  " + l)
out.append(".end_amdhsa_kernel")
print("\n".join(out))
```

```python
import sys, argparse
ap = argparse.ArgumentParser()
ap.add_argument("--stamps", type=int, default=0)
ap.add_argument("--rot", type=int, default=1)
ap.add_argument("--name", default="standalone__autoregressive_conv_wavenet__speech_kernel")
args = ap.parse_args()
STAMPS = args.stamps
name = args.name
out = []
def e(s): out.append("    " + s)
def lab(s): out.append(s + ":")
def cm(s): out.append("    ; " + s)

LDS_W = 40960
R2 = 24576
LDS_TOTAL = 4 * LDS_W
XHALF = 9216

hdr = """; Kernarg layout for this problem (48 bytes, ptrs only, base s[0:1]):
"""
out.append(hdr + f"; @launch grid=(256,1,1) block=(256,1,1) lds={LDS_TOTAL}")
out.append('.amdgcn_target "amdgcn-amd-amdhsa--gfx950"')
out.append(".text"); out.append(f".globl {name}"); out.append(".p2align 8"); out.append(f".type {name},@function"); lab(name)

SX, SW, SWO, SOUT, SDBG, SZ = 16, 20, 24, 28, 32, 36
sMT, sNT, sWV, sT0, sTMP, sTMP2, sLB = 40, 41, 42, 43, 44, 45, 46
sSELLO, sSELHI = 47, 48
sGOFF = 50
sBOFF = 62
sH0, sR6 = 66, 67
sC1, sC2, sMASK = 68, 69, 70
sEOFF, sTAG, s8K = 32, 33, 34
EPOCH_BASE = 0x400000
FLAG_BASE = 0x500000
vEP = 31
sLD = 71
sST = 80
vLANE = 1
vT = [2, 3, 4, 5, 6, 7, 8, 9]
vXA = 10
vW, vWO, vZL, vZS, vOUT, vRW, vX0, vXO, vXE = 22, 23, 24, 25, 26, 27, 28, 29, 30
vR = 32
vF = 160
vTT = 224
aXF = 128
aACC2 = 160

nst = [0]
def stamp():
    if STAMPS:
        i = nst[0]; nst[0] += 1
        e(f"s_memtime s[{sST+2*i}:{sST+2*i+1}]")

def srd(base, lo, hi, nbytes):
    e(f"s_mov_b32 s{base}, s{lo}"); e(f"s_mov_b32 s{base+1}, s{hi}")
    e(f"s_mov_b32 s{base+2}, {nbytes}"); e(f"s_mov_b32 s{base+3}, 0x20000")

if STAMPS: e("s_memrealtime s[76:77]")
stamp()
e("s_load_dwordx4 s[4:7], s[0:1], 0")
e("s_load_dwordx4 s[8:11], s[0:1], 16")
e("s_load_dwordx4 s[12:15], s[0:1], 32")
e("s_cmp_ge_u32 s2, 256")
e("s_cbranch_scc1 L_end")
cm("tile mapping: xcd = wg&7, idx = wg>>3 ; batch = xcd&1 ; mti = idx&15 ; nt = (xcd>>1)*2 + (idx>>4)")
e(f"s_lshr_b32 s{sTMP}, s2, 3")
e(f"s_and_b32 s{sT0}, s{sTMP}, 15")
e(f"s_and_b32 s3, s2, 1")
e(f"s_lshl_b32 s{sMT}, s3, 4")
e(f"s_add_u32 s{sMT}, s{sMT}, s{sT0}")
e(f"s_and_b32 s{sNT}, s2, 6")
e(f"s_lshr_b32 s{sTMP2}, s{sTMP}, 4")
e(f"s_add_u32 s{sNT}, s{sNT}, s{sTMP2}")
cm("rotation: 12 starting points from mti: rot = mti mod 12 ; h0 = rot/6 ; r6 = rot%6")
if args.rot:
    e(f"s_cmp_ge_u32 s{sT0}, 12")
    e(f"s_cselect_b32 s{sTMP2}, 9, 0")
    e(f"s_sub_u32 s{sR6}, s{sT0}, s{sTMP2}")
    e(f"s_cmp_ge_u32 s{sR6}, 6")
    e(f"s_cselect_b32 s{sH0}, 1, 0")
    e(f"s_cselect_b32 s{sTMP2}, 6, 0")
    e(f"s_sub_u32 s{sR6}, s{sR6}, s{sTMP2}")
else:
    e(f"s_mov_b32 s{sH0}, 0"); e(f"s_mov_b32 s{sR6}, 0")
e(f"s_lshl_b32 s{sT0}, s{sT0}, 6")
e(f"v_lshrrev_b32 v{vT[0]}, 6, v0")
e(f"v_and_b32 v{vLANE}, 63, v0")
e(f"s_mov_b32 s{sSELLO}, 0x05040100")
e(f"v_readfirstlane_b32 s{sWV}, v{vT[0]}")
e(f"s_mov_b32 s{sSELHI}, 0x07060302")
cm("x DMA voffsets. lane: row = l>>3, cpos = l&7 ; src chunk = cpos ^ ((4i + (l>>4))&7)")
e(f"v_lshrrev_b32 v{vT[1]}, 4, v{vLANE}")
e(f"v_and_b32 v{vT[2]}, 7, v{vLANE}")
e(f"v_xor_b32 v{vT[2]}, v{vT[2]}, v{vT[1]}")
e(f"v_lshlrev_b32 v{vT[2]}, 4, v{vT[2]}")
e(f"v_lshrrev_b32 v{vT[3]}, 3, v{vLANE}")
e(f"v_lshlrev_b32 v{vT[3]}, 10, v{vT[3]}")
e(f"v_add_u32 v{vT[2]}, v{vT[2]}, v{vT[3]}")
e(f"s_lshl_b32 s{sTMP}, s{sWV}, 8")
e(f"s_lshl_b32 s{sTMP2}, s{sT0}, 10")
e(f"s_add_u32 s{sTMP}, s{sTMP}, s{sTMP2}")
e(f"s_sub_u32 s{sTMP2}, s{sTMP}, 4096")
e(f"v_add_u32 v{vX0}, s{sTMP2}, v{vT[2]}")
e(f"s_add_u32 s{sTMP2}, s{sTMP}, 4096")
e(f"v_add_u32 v{vXE}, s{sTMP2}, v{vT[2]}")
e(f"v_xor_b32 v{vXO}, 64, v{vXE}")
cm("w voffset: p=l&15: ((p>>2)&1)*1024 + (p>>3)*64 + (p&3)*16 + nt*128 + (128*wave + 8*kgrp)*2048")
e(f"v_and_b32 v{vT[4]}, 15, v{vLANE}")
e(f"v_lshrrev_b32 v{vT[2]}, 3, v{vT[4]}")
e(f"v_lshlrev_b32 v{vT[2]}, 6, v{vT[2]}")
e(f"v_and_b32 v{vT[3]}, 3, v{vT[4]}")
e(f"v_lshlrev_b32 v{vT[3]}, 4, v{vT[3]}")
e(f"v_add_u32 v{vT[2]}, v{vT[2]}, v{vT[3]}")
e(f"v_and_b32 v{vT[3]}, 4, v{vT[4]}")
e(f"v_lshlrev_b32 v{vT[3]}, 8, v{vT[3]}")
e(f"v_add_u32 v{vT[2]}, v{vT[2]}, v{vT[3]}")
e(f"v_lshlrev_b32 v{vT[3]}, 14, v{vT[1]}")
e(f"v_add_u32 v{vT[2]}, v{vT[2]}, v{vT[3]}")
e(f"s_lshl_b32 s{sTMP}, s{sWV}, 18")
e(f"s_lshl_b32 s{sTMP2}, s{sNT}, 7")
e(f"s_add_u32 s{sTMP}, s{sTMP}, s{sTMP2}")
e(f"v_add_u32 v{vW}, s{sTMP}, v{vT[2]}")
cm("slot -> group offsets (sGOFF[u]); slot u<6: half h0 ; idx6 = (u+r6) mod 6 ; tap = idx6>>1 ; s = 2*half + (idx6&1)")
for u in range(6):
    e(f"s_add_u32 s{sTMP}, s{sR6}, {u}")
    e(f"s_cmp_ge_u32 s{sTMP}, 6")
    e(f"s_cselect_b32 s{sTMP2}, 6, 0")
    e(f"s_sub_u32 s{sTMP}, s{sTMP}, s{sTMP2}")
    e(f"s_lshr_b32 s{sTMP2}, s{sTMP}, 1")
    e(f"s_lshl_b32 s{sTMP2}, s{sTMP2}, 20")
    e(f"s_and_b32 s{sTMP}, s{sTMP}, 1")
    e(f"s_lshl_b32 s{sTMP}, s{sTMP}, 16")
    e(f"s_or_b32 s{sGOFF+u}, s{sTMP}, s{sTMP2}")
e(f"s_lshl_b32 s{sTMP}, s{sH0}, 17")
for u in range(6):
    e(f"s_or_b32 s{sGOFF+u}, s{sGOFF+u}, s{sTMP}")
    e(f"s_xor_b32 s{sGOFF+6+u}, s{sGOFF+u}, 0x20000")
e(f"s_mul_i32 s{sLB}, s{sWV}, {LDS_W}")
e("s_waitcnt lgkmcnt(0)")
stamp()
cm("SRDs (x and out per batch)")
e(f"s_mul_i32 s{sTMP}, s3, 1024000")
e(f"s_add_u32 s{SX}, s4, s{sTMP}"); e(f"s_addc_u32 s{SX+1}, s5, 0"); e(f"s_mov_b32 s{SX+2}, 1024000"); e(f"s_mov_b32 s{SX+3}, 0x20000")
srd(SW, 6, 7, 3145728)

ldn = [0]
def ldtmp():
    r = sLD + (ldn[0] % 4); ldn[0] += 1
    return r

def x_dma(second):
    e(f"s_xor_b32 s{sTMP}, s{sH0}, {second}")
    e(f"s_lshl_b32 s{sTMP}, s{sTMP}, 7")
    for i in range(9):
        e(f"s_add_u32 m0, s{sLB}, {second*XHALF + i*1024}")
        if i == 0:
            e("s_nop 0")
            e(f"buffer_load_dwordx4 v{vX0}, s[{SX}:{SX+3}], s{sTMP} offen lds")
        else:
            r = ldtmp()
            e(f"s_add_u32 s{r}, s{sTMP}, {(i-1)*8192}")
            if i == 8: e("s_mov_b64 exec, 0xffffffff")
            e(f"buffer_load_dwordx4 v{vXO if i & 1 else vXE}, s[{SX}:{SX+3}], s{r} offen lds")
            if i == 8: e("s_mov_b64 exec, -1")

def w_load_instrs(u):
    L = []
    base = vR + (u % 4) * 32
    for jj in range(8):
        r = base + jj * 4
        ins = []
        if u < 12:
            if jj % 2 == 0:
                t = ldtmp()
                ins.append(f"s_add_u32 s{t}, s{sGOFF+u}, {jj*2048}")
            ins.append(f"buffer_load_dwordx4 v[{r}:{r+3}], v{vW}, s[{SW}:{SW+3}], s{t} offen" + (" offset:2048" if jj % 2 else ""))
        else:
            s2 = u - 12
            if jj % 4 == 0:
                t = ldtmp()
                ins.append(f"s_mov_b32 s{t}, {((s2>>1)*64 + (s2&1)*8 + jj)*1024}")
            ins.append(f"buffer_load_dwordx4 v[{r}:{r+3}], v{vWO}, s[{SWO}:{SWO+3}], s{t} offen" + (f" offset:{(jj%4)*1024}" if jj % 4 else ""))
        L.append(ins)
    return L

def perm_instrs(src, dst, kp):
    L = []
    for d in range(4):
        a = src + (2*kp) * 4 + d; b = src + (2*kp+1) * 4 + d
        L.append(f"v_perm_b32 v{dst + (2*d)*4 + kp}, v{b}, v{a}, s{sSELLO}")
        L.append(f"v_perm_b32 v{dst + (2*d+1)*4 + kp}, v{b}, v{a}, s{sSELHI}")
    return L

srd(SZ, 14, 15, 0x10000000)
e(f"s_lshl_b32 s{sTMP}, s{sMT}, 7")
e(f"s_add_u32 s{sEOFF}, s{sTMP}, {EPOCH_BASE}")
e(f"v_mov_b32 v{vT[0]}, 0")
e(f"buffer_load_dword v{vEP}, v{vT[0]}, s[{SZ}:{SZ+3}], s{sEOFF} offen sc1")
x_dma(0)
for u in range(3):
    for ins in w_load_instrs(u):
        for i in ins: e(i)
x_dma(1)
for ins in w_load_instrs(3):
    for i in ins: e(i)
stamp()
cm("remaining SRDs and addresses (while loads fly)")
srd(SWO, 8, 9, 524288)
e(f"s_mul_i32 s{sTMP}, s3, 1024000")
e(f"s_add_u32 s{SOUT}, s10, s{sTMP}"); e(f"s_addc_u32 s{SOUT+1}, s11, 0"); e(f"s_mov_b32 s{SOUT+2}, 1024000"); e(f"s_mov_b32 s{SOUT+3}, 0x20000")
cm("block offsets: static beta -> actual b = (beta + wave + 1)&3 ; byte off = b*16*128")
for b in range(4):
    e(f"s_add_u32 s{sTMP}, s{sWV}, {b+1}")
    e(f"s_and_b32 s{sTMP}, s{sTMP}, 3")
    e(f"s_lshl_b32 s{sBOFF+b}, s{sTMP}, 11")
cm("x frag LDS addresses per slot: rho = m + 4 - 2*tap ; addr = LB + region*XHALF + rho*128 + (((4*(s&1)+kgrp) ^ ((rho>>1)&7))<<4)")
for u in range(6):
    e(f"s_lshr_b32 s{sTMP}, s{sGOFF+u}, 20")
    e(f"s_lshl_b32 s{sTMP}, s{sTMP}, 1")
    e(f"s_sub_u32 s{sTMP}, 4, s{sTMP}")
    e(f"v_add_u32 v{vT[2]}, s{sTMP}, v{vT[4]}")
    e(f"s_lshr_b32 s{sTMP2}, s{sGOFF+u}, 14")
    e(f"s_and_b32 s{sTMP2}, s{sTMP2}, 4")
    e(f"v_bfe_u32 v{vT[3]}, v{vT[2]}, 1, 3")
    e(f"v_xor_b32 v{vT[3]}, v{vT[3]}, v{vT[1]}")
    e(f"v_xor_b32 v{vT[3]}, s{sTMP2}, v{vT[3]}")
    e(f"v_lshlrev_b32 v{vT[3]}, 4, v{vT[3]}")
    e(f"v_lshl_add_u32 v{vT[3]}, v{vT[2]}, 7, v{vT[3]}")
    e(f"v_add_u32 v{vXA+u}, s{sLB}, v{vT[3]}")
    e(f"v_add_u32 v{vXA+6+u}, {XHALF}, v{vXA+u}")
cm("w_o voffset: (128*wave + 8*kgrp)*1024 + (nt>>1)*256 + p*16")
e(f"v_lshlrev_b32 v{vT[2]}, 14, v{vT[1]}")
e(f"v_lshl_add_u32 v{vT[2]}, v{vT[4]}, 4, v{vT[2]}")
e(f"s_lshl_b32 s{sTMP}, s{sWV}, 17")
e(f"s_lshr_b32 s{sTMP2}, s{sNT}, 1")
e(f"s_lshl_b32 s{sTMP2}, s{sTMP2}, 8")
e(f"s_add_u32 s{sTMP}, s{sTMP}, s{sTMP2}")
e(f"v_add_u32 v{vWO}, s{sTMP}, v{vT[2]}")
cm("z store voffset: mt*65536 + nt*8192 + wave*2048 + lane*16 (+ r*1024)")
e(f"v_lshlrev_b32 v{vT[2]}, 4, v{vLANE}")
e(f"s_lshl_b32 s{sTMP}, s{sMT}, 16")
e(f"s_lshl_b32 s{sTMP2}, s{sWV}, 11")
e(f"s_add_u32 s{sTMP}, s{sTMP}, s{sTMP2}")
e(f"s_lshl_b32 s{sTMP2}, s{sNT}, 13")
e(f"s_add_u32 s{sTMP}, s{sTMP}, s{sTMP2}")
e(f"v_add_u32 v{vZS}, s{sTMP}, v{vT[2]}")
cm("z load voffset: mt*65536 + wave*16384 + (2*(nt&1) + (betab^cb))*2048 + (lane ^ 2cr)*16  (+ a*8192 + r*1024)")
e(f"s_lshr_b32 s{sTMP}, s{sWV}, 1")
e(f"s_lshl_b32 s{sTMP}, s{sTMP}, 4")
e(f"s_and_b32 s{sTMP2}, s{sWV}, 1")
e(f"s_lshl_b32 s{sTMP2}, s{sTMP2}, 1")
e(f"s_or_b32 s{sC1}, s{sTMP}, s{sTMP2}")
e(f"v_xor_b32 v{vT[2]}, s{sTMP2}, v{vLANE}")
e(f"v_lshlrev_b32 v{vT[2]}, 4, v{vT[2]}")
e(f"s_lshl_b32 s{sTMP}, s{sTMP}, 7")
e(f"s_lshl_b32 s{sTMP2}, s{sMT}, 16")
e(f"s_add_u32 s{sTMP}, s{sTMP}, s{sTMP2}")
e(f"s_and_b32 s{sTMP2}, s{sNT}, 1")
e(f"s_lshl_b32 s{sTMP2}, s{sTMP2}, 12")
e(f"s_add_u32 s{sTMP}, s{sTMP}, s{sTMP2}")
e(f"s_lshl_b32 s{sTMP2}, s{sWV}, 14")
e(f"s_add_u32 s{sTMP}, s{sTMP}, s{sTMP2}")
e(f"v_add_u32 v{vZL}, s{sTMP}, v{vT[2]}")
e(f"s_mov_b32 s{s8K}, 8192")
cm("out voffset: own static unit (betab=1, rp=1): static row 16+4q+2+{0,1} ^ C1 ; bytes = (t0 + 32*(nt&1) + row)*1024 + (nt>>1)*256 + p*16")
e(f"v_lshlrev_b32 v{vT[2]}, 2, v{vT[1]}")
e(f"v_add_u32 v{vT[2]}, 18, v{vT[2]}")
e(f"v_xor_b32 v{vT[2]}, s{sC1}, v{vT[2]}")
e(f"v_lshlrev_b32 v{vT[2]}, 10, v{vT[2]}")
e(f"v_lshl_add_u32 v{vT[2]}, v{vT[4]}, 4, v{vT[2]}")
e(f"s_and_b32 s{sTMP2}, s{sNT}, 1")
e(f"s_lshl_b32 s{sTMP2}, s{sTMP2}, 5")
e(f"s_add_u32 s{sTMP}, s{sT0}, s{sTMP2}")
e(f"s_lshl_b32 s{sTMP}, s{sTMP}, 10")
e(f"s_lshr_b32 s{sTMP2}, s{sNT}, 1")
e(f"s_lshl_b32 s{sTMP2}, s{sTMP2}, 8")
e(f"s_add_u32 s{sTMP}, s{sTMP}, s{sTMP2}")
e(f"v_add_u32 v{vOUT}, s{sTMP}, v{vT[2]}")
cm("reduction write addr = LB + lane*16")
e(f"v_lshlrev_b32 v{vT[2]}, 4, v{vLANE}")
e(f"v_add_u32 v{vRW}, s{sLB}, v{vT[2]}")

def xread_instrs(u):
    L = []
    for b in range(4):
        t = vT[4 + b]
        L.append([f"v_add_u32 v{vTT+b}, s{sBOFF+b}, v{vXA+u}",
                  f"ds_read_b128 a[{aXF + (u%2)*16 + b*4}:{aXF + (u%2)*16 + b*4 + 3}], v{vTT+b}"])
    return L

cm("wait x half0 + G0 ; outstanding younger: G1 G2 Xh1 G3 = 33")
e("s_waitcnt vmcnt(41)")
for ins in xread_instrs(0):
    for i in ins: e(i)
for kp in range(4):
    e(f"s_waitcnt vmcnt({33 + 6 - 2*kp})")
    for i in perm_instrs(vR, vF, kp): e(i)
stamp()

def acc(b, j): return (b * 8 + j) * 4

for u in range(12):
    cm(f"---- slot {u}")
    F = vF + (u % 2) * 32
    XF = aXF + (u % 2) * 16
    mf = []
    for b in range(4):
        for j in range(8):
            c = "0" if u == 0 else f"a[{acc(b,j)}:{acc(b,j)+3}]"
            mf.append(f"v_mfma_f32_16x16x32_bf16 a[{acc(b,j)}:{acc(b,j)+3}], v[{F+4*j}:{F+4*j+3}], a[{XF+4*b}:{XF+4*b+3}], {c}")
    fill = [[] for _ in range(32)]
    lds = w_load_instrs(u + 4)
    for i, ins in enumerate(lds): fill[2*i] += ins
    if u < 11:
        for i, ins in enumerate(xread_instrs(u + 1)): fill[2*i + 1] += ins
        extra = 9 if u in (0, 1) else 0
        for kp in range(4):
            p = perm_instrs(vR + ((u+1) % 4) * 32, vF + ((u+1) % 2) * 32, kp)
            fill[15 + 4*kp].append(f"s_waitcnt vmcnt({24 + extra + 6 - 2*kp})")
            for i in range(4):
                fill[16 + 4*kp + i] += p[2*i:2*i+2]
    if u == 11:
        for b in range(3):
            for j in range(8):
                fill[b*8 + j + 8].append(f"ds_write_b128 v{vRW}, a[{acc(b,j)}:{acc(b,j)+3}] offset:{b*8192 + j*1024}")
    e("s_waitcnt lgkmcnt(0)")
    if u == 0: e("s_nop 1")
    for i in range(32):
        e(mf[i])
        for ins in fill[i]: e(ins)
stamp()
cm("---- reduction 1")
cm("read addresses: beta -> src = (wave - 1 - beta)&3")
e(f"v_lshlrev_b32 v{vT[2]}, 4, v{vLANE}")
for b in range(3):
    e(f"s_sub_u32 s{sTMP}, s{sWV}, {b+1}")
    e(f"s_and_b32 s{sTMP}, s{sTMP}, 3")
    e(f"s_mul_i32 s{sTMP}, s{sTMP}, {LDS_W}")
    e(f"v_add_u32 v{vT[5+b]}, s{sTMP}, v{vT[2]}")
for i in range(32):
    e(f"v_accvgpr_read_b32 v{vF+i}, a{acc(3,0)+i}")
e("s_waitcnt lgkmcnt(0)")
e("s_barrier")
for j in range(8): e(f"ds_read_b128 v[{vF+32+4*j}:{vF+32+4*j+3}], v{vT[5]} offset:{j*1024}")
for j in range(8): e(f"ds_read_b128 v[{vTT+4*j}:{vTT+4*j+3}], v{vT[6]} offset:{8192 + j*1024}")
e("s_waitcnt lgkmcnt(8)")
for i in range(0, 32, 2): e(f"v_pk_add_f32 v[{vF+i}:{vF+i+1}], v[{vF+i}:{vF+i+1}], v[{vF+32+i}:{vF+32+i+1}]")
for j in range(8): e(f"ds_read_b128 v[{vF+32+4*j}:{vF+32+4*j+3}], v{vT[7]} offset:{16384 + j*1024}")
e("s_waitcnt lgkmcnt(8)")
for i in range(0, 32, 2): e(f"v_pk_add_f32 v[{vF+i}:{vF+i+1}], v[{vF+i}:{vF+i+1}], v[{vTT+i}:{vTT+i+1}]")
e("s_waitcnt lgkmcnt(0)")
for i in range(0, 32, 2): e(f"v_pk_add_f32 v[{vF+i}:{vF+i+1}], v[{vF+i}:{vF+i+1}], v[{vF+32+i}:{vF+32+i+1}]")
stamp()
e("s_nop 1")
for j in range(8):
    e(f"v_permlane16_swap_b32 v{vF+4*j}, v{vF+4*j+2}")
    e(f"v_permlane16_swap_b32 v{vF+4*j+1}, v{vF+4*j+3}")
cm("---- gating: h[j][r] in vF+4j+r ; f: r=0,1 ; g: r=2,3")
e(f"s_mov_b32 s{sTMP}, 0xc038aa3b")
e(f"s_mov_b32 s{sTMP2}, 0xbfb8aa3b")
e(f"s_mov_b32 s{sMASK}, 0x7fffffff")
Z = vTT
def gate(elems):
    T = [vF + 32 + 4*i for i in range(len(elems))]
    for (f, g, z), t in zip(elems, T): e(f"v_mul_f32 v{t}, s{sTMP}, |v{f}|")
    for (f, g, z), t in zip(elems, T): e(f"v_mul_f32 v{t+1}, s{sTMP2}, v{g}")
    for (f, g, z), t in zip(elems, T): e(f"v_exp_f32 v{t}, v{t}")
    for (f, g, z), t in zip(elems, T): e(f"v_exp_f32 v{t+1}, v{t+1}")
    for (f, g, z), t in zip(elems, T): e(f"v_fma_f32 v{t+2}, -v{f}, v{f}, |v{f}|")
    for (f, g, z), t in zip(elems, T): e(f"v_fma_f32 v{t+3}, v{t}, 0.5, 0.5")
    for (f, g, z), t in zip(elems, T): e(f"v_fma_f32 v{t}, v{t}, -0.5, 0.5")
    for (f, g, z), t in zip(elems, T): e(f"v_fma_f32 v{t+3}, v{t+3}, v{t+1}, v{t+3}")
    for (f, g, z), t in zip(elems, T): e(f"v_rcp_f32 v{t+3}, v{t+3}")
    for (f, g, z), t in zip(elems, T): e(f"v_med3_f32 v{t}, v{t}, v{t+2}, |v{f}|")
    for (f, g, z), t in zip(elems, T): e(f"v_bfi_b32 v{t}, s{sMASK}, v{t}, v{f}")
    for (f, g, z), t in zip(elems, T): e(f"v_mul_f32 v{z}, v{t}, v{t+3}")
for r in range(2):
    gate([(vF + 4*j + r, vF + 4*j + r + 2, Z + r*8 + j) for j in range(8)])
    P = Z + 16 + r*4
    for d in range(4):
        e(f"v_cvt_pk_bf16_f32 v{P+d}, v{Z + r*8 + 2*d}, v{Z + r*8 + 2*d + 1}")
    e(f"buffer_store_dwordx4 v[{P}:{P+3}], v{vZS}, s[{SZ}:{SZ+3}], 0 offen offset:{r*1024} sc1")
stamp()
cm("tag = epoch+1 ; flag address = FLAG_BASE + ((mt*8+nt)*4+wave)*128")
e(f"v_add_u32 v{vEP}, 1, v{vEP}")
e(f"s_lshl_b32 s{sTMP}, s{sMT}, 12")
e(f"s_add_u32 s{sC2}, s{sTMP}, {FLAG_BASE}")
e(f"s_lshl_b32 s{sTMP}, s{sNT}, 9")
e(f"s_add_u32 s{sTMP}, s{sTMP}, s{sC2}")
e(f"s_lshl_b32 s{sTMP2}, s{sWV}, 7")
e(f"s_add_u32 s{sTMP}, s{sTMP}, s{sTMP2}")
e(f"v_mov_b32 v{vT[0]}, 0")
cm("poll lanes 0..3: producer nt' = 2*wave + (l>>1), wave' = 2*(nt&1) + (l&1)")
e(f"v_lshrrev_b32 v{vT[1]}, 1, v{vLANE}")
e(f"v_lshlrev_b32 v{vT[1]}, 9, v{vT[1]}")
e(f"v_and_b32 v{vT[3]}, 1, v{vLANE}")
e(f"v_lshl_add_u32 v{vT[1]}, v{vT[3]}, 7, v{vT[1]}")
e(f"s_lshl_b32 s{sTMP2}, s{sWV}, 10")
e(f"s_add_u32 s{sC2}, s{sC2}, s{sTMP2}")
e(f"s_and_b32 s{sTMP2}, s{sNT}, 1")
e(f"s_lshl_b32 s{sTMP2}, s{sTMP2}, 8")
e(f"s_add_u32 s{sC2}, s{sC2}, s{sTMP2}")
e(f"v_xor_b32 v{vT[2]}, 0x800, v{vZL}")
FO = [vF, vF + 32, vTT, vR]
cm("perm w_o: R0->F0, R1->F1 (while z stores drain)")
e("s_waitcnt vmcnt(18)")
for s2 in range(2):
    for kp in range(4):
        for i in perm_instrs(vR + s2*32, FO[s2], kp): e(i)
e("s_waitcnt vmcnt(0)")
stamp()
e("s_mov_b64 exec, 1")
e(f"buffer_store_dword v{vEP}, v{vT[0]}, s[{SZ}:{SZ+3}], s{sTMP} offen sc1")
e("s_mov_b64 exec, -1")
for s2 in range(2, 4):
    for kp in range(4):
        for i in perm_instrs(vR + s2*32, FO[s2], kp): e(i)
e(f"s_mov_b32 s{sTMP}, 0")
e("s_mov_b64 exec, 15")
lab("L_poll")
e(f"buffer_load_dword v{vT[3]}, v{vT[1]}, s[{SZ}:{SZ+3}], s{sC2} offen sc1")
e("s_waitcnt vmcnt(0)")
e(f"v_cmp_eq_u32 vcc, v{vT[3]}, v{vEP}")
e("s_nop 1")
e("s_cmp_eq_u64 vcc, exec")
e("s_cbranch_scc1 L_go")
e("s_sleep 1")
e(f"s_add_u32 s{sTMP}, s{sTMP}, 1")
e(f"s_cmp_lt_u32 s{sTMP}, 20000")
e("s_cbranch_scc1 L_poll")
lab("L_go")
e("s_mov_b64 exec, -1")
stamp()
ZF = vR + 32
for s2 in range(4):
    for bb in range(2):
        r = ZF + (s2*2 + bb) * 4
        so = ("s%d" % s8K) if s2 >= 2 else "0"
        e(f"buffer_load_dwordx4 v[{r}:{r+3}], v{vZL if bb == 0 else vT[2]}, s[{SZ}:{SZ+3}], {so} offen offset:{(s2&1)*1024} sc1")
def acc2(b, j): return aACC2 + (b*8 + j) * 4
for s2 in range(4):
    for bb in range(2):
        e(f"s_waitcnt vmcnt({7 - (s2*2 + bb)})")
        r = ZF + (s2*2 + bb) * 4
        for j in range(8):
            c = "0" if s2 == 0 else f"a[{acc2(bb,j)}:{acc2(bb,j)+3}]"
            e(f"v_mfma_f32_16x16x32_bf16 a[{acc2(bb,j)}:{acc2(bb,j)+3}], v[{r}:{r+3}], v[{FO[s2]+4*j}:{FO[s2]+4*j+3}], {c}")
stamp()
cm("---- reduction 2. region per wave: [0,8K): betab=0 b128 ; [8K,12K+): betab=1 rp=0 as b64 stored at lane*16 (low half)")
e("s_nop 7")
for j in range(8):
    e(f"ds_write_b128 v{vRW}, a[{acc2(0,j)}:{acc2(0,j)+3}] offset:{R2 + j*1024}")
for j in range(8):
    e(f"ds_write_b64 v{vRW}, a[{acc2(1,j)}:{acc2(1,j)+1}] offset:{R2 + 8192 + j*1024}")
cm("owner o reads from src = o^d (d=1,2,3): static unit in src = (1,1)^(d>>1, d&1): d=1:(1,0) ; d=2:(0,1) ; d=3:(0,0)")
e(f"v_lshlrev_b32 v{vT[3]}, 4, v{vLANE}")
for d in (1, 2, 3):
    e(f"s_xor_b32 s{sTMP}, s{sWV}, {d}")
    e(f"s_mul_i32 s{sTMP}, s{sTMP}, {LDS_W}")
    e(f"v_add_u32 v{vT[4+d]}, s{sTMP}, v{vT[3]}")
O = vF
for j in range(8):
    e(f"v_accvgpr_read_b32 v{O+2*j}, a{acc2(1,j)+2}")
    e(f"v_accvgpr_read_b32 v{O+2*j+1}, a{acc2(1,j)+3}")
e("s_waitcnt lgkmcnt(0)")
e("s_barrier")
offs = {1: R2 + 8192, 2: R2 + 8, 3: R2}
for d in (1, 2, 3):
    for j in range(8):
        r = O + 16*d + 2*j
        e(f"ds_read_b64 v[{r}:{r+1}], v{vT[4+d]} offset:{offs[d] + j*1024}")
    if d == 2: pass
for d in (1, 2, 3):
    e(f"s_waitcnt lgkmcnt({min(15, 24 - 8*d)})")
    for j in range(8):
        e(f"v_pk_add_f32 v[{O+2*j}:{O+2*j+1}], v[{O+2*j}:{O+2*j+1}], v[{O+16*d+2*j}:{O+16*d+2*j+1}]")
e(f"s_or_b32 s{sTMP}, s{sNT}, s{sWV}")
e(f"s_cmp_lg_u32 s{sTMP}, 0")
e("s_cbranch_scc1 L_noep")
e("s_mov_b64 exec, 1")
e(f"buffer_store_dword v{vEP}, v{vT[0]}, s[{SZ}:{SZ+3}], s{sEOFF} offen sc1")
e("s_mov_b64 exec, -1")
lab("L_noep")
P = vTT
for rr in range(2):
    for d in range(4):
        e(f"v_cvt_pk_bf16_f32 v{P+rr*4+d}, v{O + 4*d + rr}, v{O + 4*d + 2 + rr}")
    e(f"buffer_store_dwordx4 v[{P+rr*4}:{P+rr*4+3}], v{vOUT}, s[{SOUT}:{SOUT+3}], 0 offen offset:{rr*1024}")
if STAMPS:
    e("s_waitcnt vmcnt(0)")
    stamp()
    e("s_memrealtime s[78:79]")
    e("s_getreg_b32 s75, hwreg(HW_REG_XCC_ID)")
    e("s_waitcnt lgkmcnt(0)")
    n = nst[0]
    assert n <= 11
    e(f"v_mov_b32 v{vF}, s76"); e(f"v_mov_b32 v{vF+1}, s78"); e(f"v_mov_b32 v{vF+2}, s75"); e(f"v_mov_b32 v{vF+3}, s2")
    for i in range(1, n):
        e(f"s_sub_u32 s{sST+2*i}, s{sST+2*i}, s{sST}")
        e(f"v_mov_b32 v{vF+3+i}, s{sST+2*i}")
    if STAMPS == 1:
        e(f"s_lshl_b32 s{sTMP}, s2, 2"); e(f"s_add_u32 s{sTMP}, s{sTMP}, s{sWV}"); e(f"s_lshl_b32 s{sTMP}, s{sTMP}, 6"); e(f"s_add_u32 s{sTMP}, s{sTMP}, 0x8000000")
        e(f"v_mov_b32 v{vT[0]}, 0")
        e("s_mov_b64 exec, 1")
        for i in range(4):
            e(f"buffer_store_dwordx4 v[{vF+4*i}:{vF+4*i+3}], v{vT[0]}, s[{SZ}:{SZ+3}], s{sTMP} offen offset:{16*i}")
    else:
        e("s_load_dwordx2 s[12:13], s[0:1], 32")
        e("s_waitcnt lgkmcnt(0)")
        srd(SOUT, 12, 13, 256)
        e(f"v_mov_b32 v{vF+2}, v{vF}")
        e(f"v_not_b32 v{vF}, v{vF}")
        e(f"v_mov_b32 v{vT[0]}, 0")
        e("s_mov_b64 exec, 1")
        for i in [0, 1, 2] + list(range(4, 3 + n)):
            e(f"buffer_atomic_umax v{vF+i}, v{vT[0]}, s[{SOUT}:{SOUT+3}], 0 offen offset:{4*i}")
lab("L_end")
e("s_endpgm")
out.append('.section .rodata,"a"'); out.append(".p2align 6"); out.append(f".amdhsa_kernel {name}")
for l in [".amdhsa_next_free_vgpr 512", ".amdhsa_next_free_sgpr 102", ".amdhsa_accum_offset 256", ".amdhsa_group_segment_fixed_size 0", ".amdhsa_kernarg_size 48", ".amdhsa_user_sgpr_count 2", ".amdhsa_user_sgpr_kernarg_segment_ptr 1", ".amdhsa_system_sgpr_workgroup_id_x 1"]:
    out.append("  " + l)
out.append(".end_amdhsa_kernel")
print("\n".join(out))
```

```python
import sys, argparse
ap = argparse.ArgumentParser()
ap.add_argument("--stamps", type=int, default=0)
ap.add_argument("--rot", type=int, default=1)
ap.add_argument("--name", default="standalone__autoregressive_conv_wavenet__speech_kernel")
ap.add_argument("--probe", type=int, default=-2)
ap.add_argument("--real", type=int, default=1)
args = ap.parse_args()
if args.probe >= -1: args.stamps = 3
STAMPS = args.stamps
name = args.name
out = []
def e(s): out.append("    " + s)
def lab(s): out.append(s + ":")
def cm(s): out.append("    ; " + s)

LDS_W = 40960
R2 = 24576
LDS_TOTAL = 4 * LDS_W
XHALF = 9216

hdr = """; Kernarg layout for this problem (48 bytes, ptrs only, base s[0:1]):
"""
out.append(hdr + f"; @launch grid=(256,1,1) block=(256,1,1) lds={LDS_TOTAL}")
out.append('.amdgcn_target "amdgcn-amd-amdhsa--gfx950"')
out.append(".text"); out.append(f".globl {name}"); out.append(".p2align 8"); out.append(f".type {name},@function"); lab(name)

SX, SW, SWO, SOUT, SDBG, SZ = 16, 20, 24, 28, 32, 36
sMT, sNT, sWV, sT0, sTMP, sTMP2, sLB = 40, 41, 42, 43, 44, 45, 46
sSELLO, sSELHI = 47, 48
sGOFF = 50
sBOFF = 62
sH0, sR6 = 66, 67
sC1, sC2, sMASK = 68, 69, 70
sEOFF, sTAG, s8K = 32, 33, 34
EPOCH_BASE = 0x400000
FLAG_BASE = 0x500000
vEP = 31
sLD = 71
sST = 80
vLANE = 1
vT = [2, 3, 4, 5, 6, 7, 8, 9]
vXA = 10
vW, vWO, vZL, vZS, vOUT, vRW, vX0, vXO, vXE = 22, 23, 24, 25, 26, 27, 28, 29, 30
vR = 32
vF = 160
vTT = 224
aXF = 128
aACC2 = 160

nst = [0]
def stamp():
    if STAMPS:
        i = nst[0]; nst[0] += 1
        if STAMPS == 3:
            if i == 0 or i == args.probe:
                e(f"s_mem{'real' if args.real else ''}time s[{sST+2*i}:{sST+2*i+1}]")
        else:
            e(f"s_memtime s[{sST+2*i}:{sST+2*i+1}]")

def srd(base, lo, hi, nbytes):
    e(f"s_mov_b32 s{base}, s{lo}"); e(f"s_mov_b32 s{base+1}, s{hi}")
    e(f"s_mov_b32 s{base+2}, {nbytes}"); e(f"s_mov_b32 s{base+3}, 0x20000")

if STAMPS: e("s_memrealtime s[76:77]")
stamp()
e("s_load_dwordx4 s[4:7], s[0:1], 0")
e("s_load_dwordx4 s[8:11], s[0:1], 16")
e("s_load_dwordx4 s[12:15], s[0:1], 32")
e("s_cmp_ge_u32 s2, 256")
e("s_cbranch_scc1 L_end")
cm("tile mapping: xcd = wg&7, idx = wg>>3 ; batch = xcd&1 ; mti = idx&15 ; nt = (xcd>>1)*2 + (idx>>4)")
e(f"s_lshr_b32 s{sTMP}, s2, 3")
e(f"s_and_b32 s{sT0}, s{sTMP}, 15")
e(f"s_and_b32 s3, s2, 1")
e(f"s_lshl_b32 s{sMT}, s3, 4")
e(f"s_add_u32 s{sMT}, s{sMT}, s{sT0}")
e(f"s_and_b32 s{sNT}, s2, 6")
e(f"s_lshr_b32 s{sTMP2}, s{sTMP}, 4")
e(f"s_add_u32 s{sNT}, s{sNT}, s{sTMP2}")
cm("rotation: 12 starting points from mti: rot = mti mod 12 ; h0 = rot/6 ; r6 = rot%6")
if args.rot:
    e(f"s_cmp_ge_u32 s{sT0}, 12")
    e(f"s_cselect_b32 s{sTMP2}, 9, 0")
    e(f"s_sub_u32 s{sR6}, s{sT0}, s{sTMP2}")
    e(f"s_cmp_ge_u32 s{sR6}, 6")
    e(f"s_cselect_b32 s{sH0}, 1, 0")
    e(f"s_cselect_b32 s{sTMP2}, 6, 0")
    e(f"s_sub_u32 s{sR6}, s{sR6}, s{sTMP2}")
else:
    e(f"s_mov_b32 s{sH0}, 0"); e(f"s_mov_b32 s{sR6}, 0")
e(f"s_lshl_b32 s{sT0}, s{sT0}, 6")
e(f"v_lshrrev_b32 v{vT[0]}, 6, v0")
e(f"v_and_b32 v{vLANE}, 63, v0")
e(f"s_mov_b32 s{sSELLO}, 0x05040100")
e(f"v_readfirstlane_b32 s{sWV}, v{vT[0]}")
e(f"s_mov_b32 s{sSELHI}, 0x07060302")
cm("x DMA voffsets. lane: row = l>>3, cpos = l&7 ; src chunk = cpos ^ ((4i + (l>>4))&7)")
e(f"v_lshrrev_b32 v{vT[1]}, 4, v{vLANE}")
e(f"v_and_b32 v{vT[2]}, 7, v{vLANE}")
e(f"v_xor_b32 v{vT[2]}, v{vT[2]}, v{vT[1]}")
e(f"v_lshlrev_b32 v{vT[2]}, 4, v{vT[2]}")
e(f"v_lshrrev_b32 v{vT[3]}, 3, v{vLANE}")
e(f"v_lshlrev_b32 v{vT[3]}, 10, v{vT[3]}")
e(f"v_add_u32 v{vT[2]}, v{vT[2]}, v{vT[3]}")
e(f"s_lshl_b32 s{sTMP}, s{sWV}, 8")
e(f"s_lshl_b32 s{sTMP2}, s{sT0}, 10")
e(f"s_add_u32 s{sTMP}, s{sTMP}, s{sTMP2}")
e(f"s_sub_u32 s{sTMP2}, s{sTMP}, 4096")
e(f"v_add_u32 v{vX0}, s{sTMP2}, v{vT[2]}")
e(f"s_add_u32 s{sTMP2}, s{sTMP}, 4096")
e(f"v_add_u32 v{vXE}, s{sTMP2}, v{vT[2]}")
e(f"v_xor_b32 v{vXO}, 64, v{vXE}")
cm("w voffset: p=l&15: ((p>>2)&1)*1024 + (p>>3)*64 + (p&3)*16 + nt*128 + (128*wave + 8*kgrp)*2048")
e(f"v_and_b32 v{vT[4]}, 15, v{vLANE}")
e(f"v_lshrrev_b32 v{vT[2]}, 3, v{vT[4]}")
e(f"v_lshlrev_b32 v{vT[2]}, 6, v{vT[2]}")
e(f"v_and_b32 v{vT[3]}, 3, v{vT[4]}")
e(f"v_lshlrev_b32 v{vT[3]}, 4, v{vT[3]}")
e(f"v_add_u32 v{vT[2]}, v{vT[2]}, v{vT[3]}")
e(f"v_and_b32 v{vT[3]}, 4, v{vT[4]}")
e(f"v_lshlrev_b32 v{vT[3]}, 8, v{vT[3]}")
e(f"v_add_u32 v{vT[2]}, v{vT[2]}, v{vT[3]}")
e(f"v_lshlrev_b32 v{vT[3]}, 14, v{vT[1]}")
e(f"v_add_u32 v{vT[2]}, v{vT[2]}, v{vT[3]}")
e(f"s_lshl_b32 s{sTMP}, s{sWV}, 18")
e(f"s_lshl_b32 s{sTMP2}, s{sNT}, 7")
e(f"s_add_u32 s{sTMP}, s{sTMP}, s{sTMP2}")
e(f"v_add_u32 v{vW}, s{sTMP}, v{vT[2]}")
cm("slot -> group offsets (sGOFF[u]); slot u<6: half h0 ; idx6 = (u+r6) mod 6 ; tap = idx6>>1 ; s = 2*half + (idx6&1)")
for u in range(6):
    e(f"s_add_u32 s{sTMP}, s{sR6}, {u}")
    e(f"s_cmp_ge_u32 s{sTMP}, 6")
    e(f"s_cselect_b32 s{sTMP2}, 6, 0")
    e(f"s_sub_u32 s{sTMP}, s{sTMP}, s{sTMP2}")
    e(f"s_lshr_b32 s{sTMP2}, s{sTMP}, 1")
    e(f"s_lshl_b32 s{sTMP2}, s{sTMP2}, 20")
    e(f"s_and_b32 s{sTMP}, s{sTMP}, 1")
    e(f"s_lshl_b32 s{sTMP}, s{sTMP}, 16")
    e(f"s_or_b32 s{sGOFF+u}, s{sTMP}, s{sTMP2}")
e(f"s_lshl_b32 s{sTMP}, s{sH0}, 17")
for u in range(6):
    e(f"s_or_b32 s{sGOFF+u}, s{sGOFF+u}, s{sTMP}")
    e(f"s_xor_b32 s{sGOFF+6+u}, s{sGOFF+u}, 0x20000")
e(f"s_mul_i32 s{sLB}, s{sWV}, {LDS_W}")
e("s_waitcnt lgkmcnt(0)")
stamp()
cm("SRDs (x and out per batch)")
e(f"s_mul_i32 s{sTMP}, s3, 1024000")
e(f"s_add_u32 s{SX}, s4, s{sTMP}"); e(f"s_addc_u32 s{SX+1}, s5, 0"); e(f"s_mov_b32 s{SX+2}, 1024000"); e(f"s_mov_b32 s{SX+3}, 0x20000")
srd(SW, 6, 7, 3145728)

ldn = [0]
def ldtmp():
    r = sLD + (ldn[0] % 4); ldn[0] += 1
    return r

def x_dma(second):
    e(f"s_xor_b32 s{sTMP}, s{sH0}, {second}")
    e(f"s_lshl_b32 s{sTMP}, s{sTMP}, 7")
    for i in range(9):
        e(f"s_add_u32 m0, s{sLB}, {second*XHALF + i*1024}")
        if i == 0:
            e("s_nop 0")
            e(f"buffer_load_dwordx4 v{vX0}, s[{SX}:{SX+3}], s{sTMP} offen lds")
        else:
            r = ldtmp()
            e(f"s_add_u32 s{r}, s{sTMP}, {(i-1)*8192}")
            if i == 8: e("s_mov_b64 exec, 0xffffffff")
            e(f"buffer_load_dwordx4 v{vXO if i & 1 else vXE}, s[{SX}:{SX+3}], s{r} offen lds")
            if i == 8: e("s_mov_b64 exec, -1")

def w_load_instrs(u):
    L = []
    base = vR + (u % 4) * 32
    for jj in range(8):
        r = base + jj * 4
        ins = []
        if u < 12:
            if jj % 2 == 0:
                t = ldtmp()
                ins.append(f"s_add_u32 s{t}, s{sGOFF+u}, {jj*2048}")
            ins.append(f"buffer_load_dwordx4 v[{r}:{r+3}], v{vW}, s[{SW}:{SW+3}], s{t} offen" + (" offset:2048" if jj % 2 else ""))
        else:
            s2 = u - 12
            if jj % 4 == 0:
                t = ldtmp()
                ins.append(f"s_mov_b32 s{t}, {((s2>>1)*64 + (s2&1)*8 + jj)*1024}")
            ins.append(f"buffer_load_dwordx4 v[{r}:{r+3}], v{vWO}, s[{SWO}:{SWO+3}], s{t} offen" + (f" offset:{(jj%4)*1024}" if jj % 4 else ""))
        L.append(ins)
    return L

def perm_instrs(src, dst, kp):
    L = []
    for d in range(4):
        a = src + (2*kp) * 4 + d; b = src + (2*kp+1) * 4 + d
        L.append(f"v_perm_b32 v{dst + (2*d)*4 + kp}, v{b}, v{a}, s{sSELLO}")
        L.append(f"v_perm_b32 v{dst + (2*d+1)*4 + kp}, v{b}, v{a}, s{sSELHI}")
    return L

srd(SZ, 14, 15, 0x10000000)
e(f"s_lshl_b32 s{sTMP}, s{sMT}, 7")
e(f"s_add_u32 s{sEOFF}, s{sTMP}, {EPOCH_BASE}")
e(f"v_mov_b32 v{vT[0]}, 0")
e(f"buffer_load_dword v{vEP}, v{vT[0]}, s[{SZ}:{SZ+3}], s{sEOFF} offen sc1")
x_dma(0)
for u in range(3):
    for ins in w_load_instrs(u):
        for i in ins: e(i)
x_dma(1)
for ins in w_load_instrs(3):
    for i in ins: e(i)
stamp()
cm("remaining SRDs and addresses (while loads fly)")
srd(SWO, 8, 9, 524288)
e(f"s_mul_i32 s{sTMP}, s3, 1024000")
e(f"s_add_u32 s{SOUT}, s10, s{sTMP}"); e(f"s_addc_u32 s{SOUT+1}, s11, 0"); e(f"s_mov_b32 s{SOUT+2}, 1024000"); e(f"s_mov_b32 s{SOUT+3}, 0x20000")
cm("block offsets: static beta -> actual b = (beta + wave + 1)&3 ; byte off = b*16*128")
for b in range(4):
    e(f"s_add_u32 s{sTMP}, s{sWV}, {b+1}")
    e(f"s_and_b32 s{sTMP}, s{sTMP}, 3")
    e(f"s_lshl_b32 s{sBOFF+b}, s{sTMP}, 11")
cm("x frag LDS addresses per slot: rho = m + 4 - 2*tap ; addr = LB + region*XHALF + rho*128 + (((4*(s&1)+kgrp) ^ ((rho>>1)&7))<<4)")
for u in range(6):
    e(f"s_lshr_b32 s{sTMP}, s{sGOFF+u}, 20")
    e(f"s_lshl_b32 s{sTMP}, s{sTMP}, 1")
    e(f"s_sub_u32 s{sTMP}, 4, s{sTMP}")
    e(f"v_add_u32 v{vT[2]}, s{sTMP}, v{vT[4]}")
    e(f"s_lshr_b32 s{sTMP2}, s{sGOFF+u}, 14")
    e(f"s_and_b32 s{sTMP2}, s{sTMP2}, 4")
    e(f"v_bfe_u32 v{vT[3]}, v{vT[2]}, 1, 3")
    e(f"v_xor_b32 v{vT[3]}, v{vT[3]}, v{vT[1]}")
    e(f"v_xor_b32 v{vT[3]}, s{sTMP2}, v{vT[3]}")
    e(f"v_lshlrev_b32 v{vT[3]}, 4, v{vT[3]}")
    e(f"v_lshl_add_u32 v{vT[3]}, v{vT[2]}, 7, v{vT[3]}")
    e(f"v_add_u32 v{vXA+u}, s{sLB}, v{vT[3]}")
    e(f"v_add_u32 v{vXA+6+u}, {XHALF}, v{vXA+u}")
cm("w_o voffset: (128*wave + 8*kgrp)*1024 + (nt>>1)*256 + p*16")
e(f"v_lshlrev_b32 v{vT[2]}, 14, v{vT[1]}")
e(f"v_lshl_add_u32 v{vT[2]}, v{vT[4]}, 4, v{vT[2]}")
e(f"s_lshl_b32 s{sTMP}, s{sWV}, 17")
e(f"s_lshr_b32 s{sTMP2}, s{sNT}, 1")
e(f"s_lshl_b32 s{sTMP2}, s{sTMP2}, 8")
e(f"s_add_u32 s{sTMP}, s{sTMP}, s{sTMP2}")
e(f"v_add_u32 v{vWO}, s{sTMP}, v{vT[2]}")
cm("z store voffset: mt*65536 + nt*8192 + wave*2048 + lane*16 (+ r*1024)")
e(f"v_lshlrev_b32 v{vT[2]}, 4, v{vLANE}")
e(f"s_lshl_b32 s{sTMP}, s{sMT}, 16")
e(f"s_lshl_b32 s{sTMP2}, s{sWV}, 11")
e(f"s_add_u32 s{sTMP}, s{sTMP}, s{sTMP2}")
e(f"s_lshl_b32 s{sTMP2}, s{sNT}, 13")
e(f"s_add_u32 s{sTMP}, s{sTMP}, s{sTMP2}")
e(f"v_add_u32 v{vZS}, s{sTMP}, v{vT[2]}")
cm("z load voffset: mt*65536 + wave*16384 + (2*(nt&1) + (betab^cb))*2048 + (lane ^ 2cr)*16  (+ a*8192 + r*1024)")
e(f"s_lshr_b32 s{sTMP}, s{sWV}, 1")
e(f"s_lshl_b32 s{sTMP}, s{sTMP}, 4")
e(f"s_and_b32 s{sTMP2}, s{sWV}, 1")
e(f"s_lshl_b32 s{sTMP2}, s{sTMP2}, 1")
e(f"s_or_b32 s{sC1}, s{sTMP}, s{sTMP2}")
e(f"v_xor_b32 v{vT[2]}, s{sTMP2}, v{vLANE}")
e(f"v_lshlrev_b32 v{vT[2]}, 4, v{vT[2]}")
e(f"s_lshl_b32 s{sTMP}, s{sTMP}, 7")
e(f"s_lshl_b32 s{sTMP2}, s{sMT}, 16")
e(f"s_add_u32 s{sTMP}, s{sTMP}, s{sTMP2}")
e(f"s_and_b32 s{sTMP2}, s{sNT}, 1")
e(f"s_lshl_b32 s{sTMP2}, s{sTMP2}, 12")
e(f"s_add_u32 s{sTMP}, s{sTMP}, s{sTMP2}")
e(f"s_lshl_b32 s{sTMP2}, s{sWV}, 14")
e(f"s_add_u32 s{sTMP}, s{sTMP}, s{sTMP2}")
e(f"v_add_u32 v{vZL}, s{sTMP}, v{vT[2]}")
e(f"s_mov_b32 s{s8K}, 8192")
cm("out voffset: own static unit (betab=1, rp=1): static row 16+4q+2+{0,1} ^ C1 ; bytes = (t0 + 32*(nt&1) + row)*1024 + (nt>>1)*256 + p*16")
e(f"v_lshlrev_b32 v{vT[2]}, 2, v{vT[1]}")
e(f"v_add_u32 v{vT[2]}, 18, v{vT[2]}")
e(f"v_xor_b32 v{vT[2]}, s{sC1}, v{vT[2]}")
e(f"v_lshlrev_b32 v{vT[2]}, 10, v{vT[2]}")
e(f"v_lshl_add_u32 v{vT[2]}, v{vT[4]}, 4, v{vT[2]}")
e(f"s_and_b32 s{sTMP2}, s{sNT}, 1")
e(f"s_lshl_b32 s{sTMP2}, s{sTMP2}, 5")
e(f"s_add_u32 s{sTMP}, s{sT0}, s{sTMP2}")
e(f"s_lshl_b32 s{sTMP}, s{sTMP}, 10")
e(f"s_lshr_b32 s{sTMP2}, s{sNT}, 1")
e(f"s_lshl_b32 s{sTMP2}, s{sTMP2}, 8")
e(f"s_add_u32 s{sTMP}, s{sTMP}, s{sTMP2}")
e(f"v_add_u32 v{vOUT}, s{sTMP}, v{vT[2]}")
cm("reduction write addr = LB + lane*16")
e(f"v_lshlrev_b32 v{vT[2]}, 4, v{vLANE}")
e(f"v_add_u32 v{vRW}, s{sLB}, v{vT[2]}")

def xread_instrs(u):
    L = []
    for b in range(4):
        t = vT[4 + b]
        L.append([f"v_add_u32 v{vTT+b}, s{sBOFF+b}, v{vXA+u}",
                  f"ds_read_b128 a[{aXF + (u%2)*16 + b*4}:{aXF + (u%2)*16 + b*4 + 3}], v{vTT+b}"])
    return L

cm("wait x half0 + G0 ; outstanding younger: G1 G2 Xh1 G3 = 33")
e("s_waitcnt vmcnt(41)")
for ins in xread_instrs(0):
    for i in ins: e(i)
for kp in range(4):
    e(f"s_waitcnt vmcnt({33 + 6 - 2*kp})")
    for i in perm_instrs(vR, vF, kp): e(i)
stamp()

def acc(b, j): return (b * 8 + j) * 4

for u in range(12):
    cm(f"---- slot {u}")
    F = vF + (u % 2) * 32
    XF = aXF + (u % 2) * 16
    mf = []
    for b in range(4):
        for j in range(8):
            c = "0" if u == 0 else f"a[{acc(b,j)}:{acc(b,j)+3}]"
            mf.append(f"v_mfma_f32_16x16x32_bf16 a[{acc(b,j)}:{acc(b,j)+3}], v[{F+4*j}:{F+4*j+3}], a[{XF+4*b}:{XF+4*b+3}], {c}")
    fill = [[] for _ in range(32)]
    lds = w_load_instrs(u + 4)
    for i, ins in enumerate(lds): fill[2*i] += ins
    if u < 11:
        for i, ins in enumerate(xread_instrs(u + 1)): fill[2*i + 1] += ins
        extra = 9 if u in (0, 1) else 0
        for kp in range(4):
            p = perm_instrs(vR + ((u+1) % 4) * 32, vF + ((u+1) % 2) * 32, kp)
            fill[15 + 4*kp].append(f"s_waitcnt vmcnt({24 + extra + 6 - 2*kp})")
            for i in range(4):
                fill[16 + 4*kp + i] += p[2*i:2*i+2]
    if u == 11:
        for b in range(3):
            for j in range(8):
                fill[b*8 + j + 8].append(f"ds_write_b128 v{vRW}, a[{acc(b,j)}:{acc(b,j)+3}] offset:{b*8192 + j*1024}")
    e("s_waitcnt lgkmcnt(0)")
    if u == 0: e("s_nop 1")
    for i in range(32):
        e(mf[i])
        for ins in fill[i]: e(ins)
stamp()
cm("---- reduction 1")
cm("read addresses: beta -> src = (wave - 1 - beta)&3")
e(f"v_lshlrev_b32 v{vT[2]}, 4, v{vLANE}")
for b in range(3):
    e(f"s_sub_u32 s{sTMP}, s{sWV}, {b+1}")
    e(f"s_and_b32 s{sTMP}, s{sTMP}, 3")
    e(f"s_mul_i32 s{sTMP}, s{sTMP}, {LDS_W}")
    e(f"v_add_u32 v{vT[5+b]}, s{sTMP}, v{vT[2]}")
for i in range(32):
    e(f"v_accvgpr_read_b32 v{vF+i}, a{acc(3,0)+i}")
e("s_waitcnt lgkmcnt(0)")
e("s_barrier")
for j in range(8): e(f"ds_read_b128 v[{vF+32+4*j}:{vF+32+4*j+3}], v{vT[5]} offset:{j*1024}")
for j in range(8): e(f"ds_read_b128 v[{vTT+4*j}:{vTT+4*j+3}], v{vT[6]} offset:{8192 + j*1024}")
e("s_waitcnt lgkmcnt(8)")
for i in range(0, 32, 2): e(f"v_pk_add_f32 v[{vF+i}:{vF+i+1}], v[{vF+i}:{vF+i+1}], v[{vF+32+i}:{vF+32+i+1}]")
for j in range(8): e(f"ds_read_b128 v[{vF+32+4*j}:{vF+32+4*j+3}], v{vT[7]} offset:{16384 + j*1024}")
e("s_waitcnt lgkmcnt(8)")
for i in range(0, 32, 2): e(f"v_pk_add_f32 v[{vF+i}:{vF+i+1}], v[{vF+i}:{vF+i+1}], v[{vTT+i}:{vTT+i+1}]")
e("s_waitcnt lgkmcnt(0)")
for i in range(0, 32, 2): e(f"v_pk_add_f32 v[{vF+i}:{vF+i+1}], v[{vF+i}:{vF+i+1}], v[{vF+32+i}:{vF+32+i+1}]")
stamp()
e("s_nop 1")
for j in range(8):
    e(f"v_permlane16_swap_b32 v{vF+4*j}, v{vF+4*j+2}")
    e(f"v_permlane16_swap_b32 v{vF+4*j+1}, v{vF+4*j+3}")
cm("---- gating: h[j][r] in vF+4j+r ; f: r=0,1 ; g: r=2,3")
e(f"s_mov_b32 s{sTMP}, 0xc038aa3b")
e(f"s_mov_b32 s{sTMP2}, 0xbfb8aa3b")
e(f"s_mov_b32 s{sMASK}, 0x7fffffff")
Z = vTT
def gate(elems):
    T = [vF + 32 + 4*i for i in range(len(elems))]
    for (f, g, z), t in zip(elems, T): e(f"v_mul_f32 v{t}, s{sTMP}, |v{f}|")
    for (f, g, z), t in zip(elems, T): e(f"v_mul_f32 v{t+1}, s{sTMP2}, v{g}")
    for (f, g, z), t in zip(elems, T): e(f"v_exp_f32 v{t}, v{t}")
    for (f, g, z), t in zip(elems, T): e(f"v_exp_f32 v{t+1}, v{t+1}")
    for (f, g, z), t in zip(elems, T): e(f"v_fma_f32 v{t+2}, -v{f}, v{f}, |v{f}|")
    for (f, g, z), t in zip(elems, T): e(f"v_fma_f32 v{t+3}, v{t}, 0.5, 0.5")
    for (f, g, z), t in zip(elems, T): e(f"v_fma_f32 v{t}, v{t}, -0.5, 0.5")
    for (f, g, z), t in zip(elems, T): e(f"v_fma_f32 v{t+3}, v{t+3}, v{t+1}, v{t+3}")
    for (f, g, z), t in zip(elems, T): e(f"v_rcp_f32 v{t+3}, v{t+3}")
    for (f, g, z), t in zip(elems, T): e(f"v_med3_f32 v{t}, v{t}, v{t+2}, |v{f}|")
    for (f, g, z), t in zip(elems, T): e(f"v_bfi_b32 v{t}, s{sMASK}, v{t}, v{f}")
    for (f, g, z), t in zip(elems, T): e(f"v_mul_f32 v{z}, v{t}, v{t+3}")
for r in range(2):
    gate([(vF + 4*j + r, vF + 4*j + r + 2, Z + r*8 + j) for j in range(8)])
    P = Z + 16 + r*4
    for d in range(4):
        e(f"v_cvt_pk_bf16_f32 v{P+d}, v{Z + r*8 + 2*d}, v{Z + r*8 + 2*d + 1}")
    e(f"buffer_store_dwordx4 v[{P}:{P+3}], v{vZS}, s[{SZ}:{SZ+3}], 0 offen offset:{r*1024} sc1")
stamp()
cm("tag = epoch+1 ; flag address = FLAG_BASE + ((mt*8+nt)*4+wave)*128")
e(f"v_add_u32 v{vEP}, 1, v{vEP}")
e(f"s_lshl_b32 s{sTMP}, s{sMT}, 12")
e(f"s_add_u32 s{sC2}, s{sTMP}, {FLAG_BASE}")
e(f"s_lshl_b32 s{sTMP}, s{sNT}, 9")
e(f"s_add_u32 s{sTMP}, s{sTMP}, s{sC2}")
e(f"s_lshl_b32 s{sTMP2}, s{sWV}, 7")
e(f"s_add_u32 s{sTMP}, s{sTMP}, s{sTMP2}")
e(f"v_mov_b32 v{vT[0]}, 0")
cm("poll lanes 0..3: producer nt' = 2*wave + (l>>1), wave' = 2*(nt&1) + (l&1)")
e(f"v_lshrrev_b32 v{vT[1]}, 1, v{vLANE}")
e(f"v_lshlrev_b32 v{vT[1]}, 9, v{vT[1]}")
e(f"v_and_b32 v{vT[3]}, 1, v{vLANE}")
e(f"v_lshl_add_u32 v{vT[1]}, v{vT[3]}, 7, v{vT[1]}")
e(f"s_lshl_b32 s{sTMP2}, s{sWV}, 10")
e(f"s_add_u32 s{sC2}, s{sC2}, s{sTMP2}")
e(f"s_and_b32 s{sTMP2}, s{sNT}, 1")
e(f"s_lshl_b32 s{sTMP2}, s{sTMP2}, 8")
e(f"s_add_u32 s{sC2}, s{sC2}, s{sTMP2}")
e(f"v_xor_b32 v{vT[2]}, 0x800, v{vZL}")
FO = [vF, vF + 32, vTT, vR]
cm("perm w_o: R0->F0, R1->F1 (while z stores drain)")
e("s_waitcnt vmcnt(18)")
for s2 in range(2):
    for kp in range(4):
        for i in perm_instrs(vR + s2*32, FO[s2], kp): e(i)
e("s_waitcnt vmcnt(0)")
stamp()
e("s_mov_b64 exec, 1")
e(f"buffer_store_dword v{vEP}, v{vT[0]}, s[{SZ}:{SZ+3}], s{sTMP} offen sc1")
e("s_mov_b64 exec, -1")
for s2 in range(2, 4):
    for kp in range(4):
        for i in perm_instrs(vR + s2*32, FO[s2], kp): e(i)
e(f"s_mov_b32 s{sTMP}, 0")
e("s_mov_b64 exec, 15")
lab("L_poll")
e(f"buffer_load_dword v{vT[3]}, v{vT[1]}, s[{SZ}:{SZ+3}], s{sC2} offen sc1")
e("s_waitcnt vmcnt(0)")
e(f"v_cmp_eq_u32 vcc, v{vT[3]}, v{vEP}")
e("s_nop 1")
e("s_cmp_eq_u64 vcc, exec")
e("s_cbranch_scc1 L_go")
e("s_sleep 1")
e(f"s_add_u32 s{sTMP}, s{sTMP}, 1")
e(f"s_cmp_lt_u32 s{sTMP}, 20000")
e("s_cbranch_scc1 L_poll")
lab("L_go")
e("s_mov_b64 exec, -1")
stamp()
ZF = vR + 32
for s2 in range(4):
    for bb in range(2):
        r = ZF + (s2*2 + bb) * 4
        so = ("s%d" % s8K) if s2 >= 2 else "0"
        e(f"buffer_load_dwordx4 v[{r}:{r+3}], v{vZL if bb == 0 else vT[2]}, s[{SZ}:{SZ+3}], {so} offen offset:{(s2&1)*1024} sc1")
def acc2(b, j): return aACC2 + (b*8 + j) * 4
for s2 in range(4):
    for bb in range(2):
        e(f"s_waitcnt vmcnt({7 - (s2*2 + bb)})")
        r = ZF + (s2*2 + bb) * 4
        for j in range(8):
            c = "0" if s2 == 0 else f"a[{acc2(bb,j)}:{acc2(bb,j)+3}]"
            e(f"v_mfma_f32_16x16x32_bf16 a[{acc2(bb,j)}:{acc2(bb,j)+3}], v[{r}:{r+3}], v[{FO[s2]+4*j}:{FO[s2]+4*j+3}], {c}")
stamp()
cm("---- reduction 2. region per wave: [0,8K): betab=0 b128 ; [8K,12K+): betab=1 rp=0 as b64 stored at lane*16 (low half)")
e("s_nop 7")
for j in range(8):
    e(f"ds_write_b128 v{vRW}, a[{acc2(0,j)}:{acc2(0,j)+3}] offset:{R2 + j*1024}")
for j in range(8):
    e(f"ds_write_b64 v{vRW}, a[{acc2(1,j)}:{acc2(1,j)+1}] offset:{R2 + 8192 + j*1024}")
cm("owner o reads from src = o^d (d=1,2,3): static unit in src = (1,1)^(d>>1, d&1): d=1:(1,0) ; d=2:(0,1) ; d=3:(0,0)")
e(f"v_lshlrev_b32 v{vT[3]}, 4, v{vLANE}")
for d in (1, 2, 3):
    e(f"s_xor_b32 s{sTMP}, s{sWV}, {d}")
    e(f"s_mul_i32 s{sTMP}, s{sTMP}, {LDS_W}")
    e(f"v_add_u32 v{vT[4+d]}, s{sTMP}, v{vT[3]}")
O = vF
for j in range(8):
    e(f"v_accvgpr_read_b32 v{O+2*j}, a{acc2(1,j)+2}")
    e(f"v_accvgpr_read_b32 v{O+2*j+1}, a{acc2(1,j)+3}")
e("s_waitcnt lgkmcnt(0)")
e("s_barrier")
offs = {1: R2 + 8192, 2: R2 + 8, 3: R2}
for d in (1, 2, 3):
    for j in range(8):
        r = O + 16*d + 2*j
        e(f"ds_read_b64 v[{r}:{r+1}], v{vT[4+d]} offset:{offs[d] + j*1024}")
    if d == 2: pass
for d in (1, 2, 3):
    e(f"s_waitcnt lgkmcnt({min(15, 24 - 8*d)})")
    for j in range(8):
        e(f"v_pk_add_f32 v[{O+2*j}:{O+2*j+1}], v[{O+2*j}:{O+2*j+1}], v[{O+16*d+2*j}:{O+16*d+2*j+1}]")
e(f"s_or_b32 s{sTMP}, s{sNT}, s{sWV}")
e(f"s_cmp_lg_u32 s{sTMP}, 0")
e("s_cbranch_scc1 L_noep")
e("s_mov_b64 exec, 1")
e(f"buffer_store_dword v{vEP}, v{vT[0]}, s[{SZ}:{SZ+3}], s{sEOFF} offen sc1")
e("s_mov_b64 exec, -1")
lab("L_noep")
P = vTT
for rr in range(2):
    for d in range(4):
        e(f"v_cvt_pk_bf16_f32 v{P+rr*4+d}, v{O + 4*d + rr}, v{O + 4*d + 2 + rr}")
    e(f"buffer_store_dwordx4 v[{P+rr*4}:{P+rr*4+3}], v{vOUT}, s[{SOUT}:{SOUT+3}], 0 offen offset:{rr*1024}")
if STAMPS == 3:
    e("s_waitcnt vmcnt(0)")
    stamp()
    e("s_waitcnt lgkmcnt(0)")
    if args.probe > 0:
        e(f"s_sub_u32 s{sTMP}, s{sST+2*args.probe}, s{sST}")
        if args.real: e(f"s_mul_i32 s{sTMP}, s{sTMP}, 10")
        else: e(f"s_lshr_b32 s{sTMP}, s{sTMP}, 1")
    else:
        e(f"s_mov_b32 s{sTMP}, 0")
    e(f"s_add_u32 s{sTMP}, s{sTMP}, 4000")
    lab("L_spin")
    e("s_sleep 2")
    e("s_memrealtime s[78:79]")
    e("s_waitcnt lgkmcnt(0)")
    e(f"s_sub_u32 s{sTMP2}, s78, s76")
    e(f"s_cmp_lt_u32 s{sTMP2}, s{sTMP}")
    e("s_cbranch_scc1 L_spin")
elif STAMPS:
    e("s_waitcnt vmcnt(0)")
    stamp()
    e("s_memrealtime s[78:79]")
    e("s_getreg_b32 s75, hwreg(HW_REG_XCC_ID)")
    e("s_waitcnt lgkmcnt(0)")
    n = nst[0]
    assert n <= 11
    e(f"v_mov_b32 v{vF}, s76"); e(f"v_mov_b32 v{vF+1}, s78"); e(f"v_mov_b32 v{vF+2}, s75"); e(f"v_mov_b32 v{vF+3}, s2")
    for i in range(1, n):
        e(f"s_sub_u32 s{sST+2*i}, s{sST+2*i}, s{sST}")
        e(f"v_mov_b32 v{vF+3+i}, s{sST+2*i}")
    if STAMPS == 1:
        e(f"s_lshl_b32 s{sTMP}, s2, 2"); e(f"s_add_u32 s{sTMP}, s{sTMP}, s{sWV}"); e(f"s_lshl_b32 s{sTMP}, s{sTMP}, 6"); e(f"s_add_u32 s{sTMP}, s{sTMP}, 0x8000000")
        e(f"v_mov_b32 v{vT[0]}, 0")
        e("s_mov_b64 exec, 1")
        for i in range(4):
            e(f"buffer_store_dwordx4 v[{vF+4*i}:{vF+4*i+3}], v{vT[0]}, s[{SZ}:{SZ+3}], s{sTMP} offen offset:{16*i}")
    else:
        e("s_load_dwordx2 s[12:13], s[0:1], 32")
        e("s_waitcnt lgkmcnt(0)")
        srd(SOUT, 12, 13, 256)
        e(f"v_mov_b32 v{vF+2}, v{vF}")
        e(f"v_not_b32 v{vF}, v{vF}")
        e(f"v_mov_b32 v{vT[0]}, 0")
        e("s_mov_b64 exec, 1")
        for i in [0, 1, 2] + list(range(4, 3 + n)):
            e(f"buffer_atomic_umax v{vF+i}, v{vT[0]}, s[{SOUT}:{SOUT+3}], 0 offen offset:{4*i}")
lab("L_end")
e("s_endpgm")
out.append('.section .rodata,"a"'); out.append(".p2align 6"); out.append(f".amdhsa_kernel {name}")
for l in [".amdhsa_next_free_vgpr 512", ".amdhsa_next_free_sgpr 102", ".amdhsa_accum_offset 256", ".amdhsa_group_segment_fixed_size 0", ".amdhsa_kernarg_size 48", ".amdhsa_user_sgpr_count 2", ".amdhsa_user_sgpr_kernarg_segment_ptr 1", ".amdhsa_system_sgpr_workgroup_id_x 1"]:
    out.append("  " + l)
out.append(".end_amdhsa_kernel")
print("\n".join(out))
```

```python
import sys, argparse, copy
ap = argparse.ArgumentParser()
ap.add_argument("--stamps", type=int, default=0)
ap.add_argument("--name", default="standalone__autoregressive_conv_wavenet__speech_kernel")
ap.add_argument("--probe", type=int, default=-2)
ap.add_argument("--real", type=int, default=1)
ap.add_argument("--h0", default="zero")
ap.add_argument("--r6", default="all")
ap.add_argument("--nm", type=int, default=3)
ap.add_argument("--xrot", type=int, default=1)
ap.add_argument("--pro", default="G0,Q0,S,C,Q1,Q2,Q3,G1,G2")
ap.add_argument("--rest", default="G3,Y0,G4,Y1,G5,Y2,G6,Y3,G7,G8,G9,G10,G11")
ap.add_argument("--per", default="8")
ap.add_argument("--ackslot", type=int, default=2)
ap.add_argument("--ackld", type=int, default=1)
ap.add_argument("--lag", type=int, default=4)
ap.add_argument("--spin", type=int, default=20000)
ap.add_argument("--slotstamps", type=int, default=0)
args = ap.parse_args()
if args.probe >= -1: args.stamps = 3
STAMPS = args.stamps
NM = args.nm; NS = 12 - NM
name = args.name
out = []
vmlist = []; lglist = []
def e(s): out.append("    " + s)
def lab(s): out.append(s + ":")
def cm(s): out.append("    ; " + s)
def emit(x):
    if isinstance(x, str): e(x)
    elif isinstance(x, list): emits(x)
    elif x[0] == "vm": vmlist.append(x[1]); e(x[2])
    elif x[0] == "lg": lglist.append(x[1]); e(x[2])
    elif x[0] == "wait":
        n = len(vmlist) - 1 - max(i for i, t in enumerate(vmlist) if t == x[1])
        e(f"s_waitcnt vmcnt({min(n, 63)})")
    elif x[0] == "lwait":
        n = len(lglist) - 1 - max(i for i, t in enumerate(lglist) if t == x[1])
        e(f"s_waitcnt lgkmcnt({min(n, 15)})")
    elif x[0] == "stamp": stamp(*x[1:])
def emits(L):
    for x in L: emit(x)
def text(x):
    return x if isinstance(x, str) else (x[2] if x[0] in ("vm", "lg") else "s_waitcnt")
def cost(x):
    if isinstance(x, list): return sum(cost(y) for y in x)
    t = text(x)
    if t.startswith("s_"): return 0.5
    if t.startswith(("v_exp", "v_rcp")): return 2
    if t.startswith("ds_write_b128"): return 3.5
    return 1
def schedule(ng, streams, cap=2.0):
    fill = [[] for _ in range(ng)]
    load = [0.0] * ng
    for items, lo, hi in streams:
        hi = min(hi, ng)
        tot = sum(cost(i) for i in items)
        lvl = cap
        while sum(max(0, lvl - load[g]) for g in range(lo, hi)) < tot + 0.01: lvl += 0.5
        room = sum(max(0, lvl - load[g]) for g in range(lo, hi))
        g = lo; done = 0.0; cum = 0.0
        cumroom = {}
        for k in range(lo, hi):
            cum += max(0, lvl - load[k]); cumroom[k] = cum
        add = [0.0] * ng
        for it in items:
            c = cost(it)
            target = (done + c * 0.5) / tot * room if tot else 0
            while g < hi - 1 and (cumroom[g] < target or load[g] + add[g] + c > lvl + 0.01 and load[g] + add[g] > 0): g += 1
            fill[g].append(it); add[g] += c; done += c
        for k in range(ng): load[k] += add[k]
    return fill

LDS_W = 40960; LDS_TOTAL = 4 * LDS_W; XHALF = 17408
EPOCH_BASE = 0x400000; FLAG_BASE = 0x410000

hdr = """; Fused dilated causal conv (3 taps) + tanh*sigmoid gate + output projection, gfx950.
"""
out.append(hdr + f"; @launch grid=(256,1,1) block=(256,1,1) lds={LDS_TOTAL}")
out.append('.amdgcn_target "amdgcn-amd-amdhsa--gfx950"')
out.append(".text"); out.append(f".globl {name}"); out.append(".p2align 8"); out.append(f".type {name},@function"); lab(name)

SX, SW, SWO, SOUT, SZ = 16, 20, 24, 28, 36
sEOFF, sK1, sK2, sK3 = 32, 33, 34, 35
sMT, sNT, sWV, sT0, sTMP, sTMP2, sLB = 40, 41, 42, 43, 44, 45, 46
sSELLO, sSELHI, sCG = 47, 48, 49
sGOFF = 50
sFLG, sACK, sP1, sP2 = 62, 63, 64, 65
sH0, sR6, sP3, sCNT, sXH = 66, 67, 68, 69, 70
sLD = 71
sRP = 75
sBAT, sHH = 3, 69
sST = 80
sACT, sMSK = 4, 6
sWOK = 8
vLANE = 1; vZERO = 2
vT = [3, 4, 5, 6, 7, 8, 9]
vXA = 10
vRR = 16
vW2, vXK3, vACK, vAKA, vZL2 = 17, 18, 19, 20, 21
vW, vWO, vZL, vZS, vOUT, vRW, vX0, vXK0, vXK1, vEP = 22, 23, 24, 25, 26, 27, 28, 29, 30, 31
vXK2 = 0
vXK = [vXK0, vXK1, vXK2, vXK3]
vA = 32; vB = 160; vC = 224
aXF = 128; aACC2 = 192

nst = [0]
def stamp(kind=0):
    if args.slotstamps and nst[0] > 0 and kind != args.slotstamps: return
    if STAMPS:
        i = nst[0]; nst[0] += 1
        if STAMPS == 3:
            if i == 0 or i == args.probe:
                e(f"s_mem{'real' if args.real else ''}time s[{sST+2*i}:{sST+2*i+1}]")
        else:
            e(f"s_mem{'real' if STAMPS == 2 else ''}time s[{sST+2*i}:{sST+2*i+1}]")
def srd(base, lo, hi, nbytes):
    e(f"s_mov_b32 s{base}, s{lo}"); e(f"s_mov_b32 s{base+1}, s{hi}")
    e(f"s_mov_b32 s{base+2}, {nbytes}"); e(f"s_mov_b32 s{base+3}, 0x20000")

if STAMPS: e("s_memrealtime s[76:77]")
stamp()
e("s_load_dwordx4 s[4:7], s[0:1], 0")
e("s_load_dwordx4 s[8:11], s[0:1], 16")
e("s_load_dwordx4 s[12:15], s[0:1], 32")
e("s_cmp_ge_u32 s2, 256")
e("s_cbranch_scc1 L_end")
e(f"v_lshrrev_b32 v{vT[0]}, 6, v0")
e(f"v_and_b32 v{vLANE}, 63, v0")
e(f"s_lshr_b32 s{sTMP}, s2, 3")
e(f"v_readfirstlane_b32 s{sWV}, v{vT[0]}")
e(f"s_and_b32 s{sT0}, s{sTMP}, 7")
e(f"s_and_b32 s3, s2, 1")
e(f"s_lshl_b32 s{sMT}, s3, 3")
e(f"s_add_u32 s{sMT}, s{sMT}, s{sT0}")
e(f"s_bfe_u32 s{sRP}, s2, 0x20001")
e(f"s_lshr_b32 s{sCG}, s{sTMP}, 3")
e(f"s_lshl_b32 s{sNT}, s{sRP}, 2")
e(f"s_add_u32 s{sNT}, s{sNT}, s{sCG}")
if args.h0 == "mix":
    e(f"s_add_u32 s{sH0}, s{sT0}, s{sCG}"); e(f"s_and_b32 s{sH0}, s{sH0}, 1")
elif args.h0 == "mti":
    e(f"s_and_b32 s{sH0}, s{sT0}, 1")
else:
    e(f"s_mov_b32 s{sH0}, 0")
if args.r6 == "mti":
    e(f"s_lshr_b32 s{sR6}, s{sT0}, 1"); e(f"s_mul_i32 s{sR6}, s{sR6}, 3"); e(f"s_lshr_b32 s{sR6}, s{sR6}, 1")
elif args.r6 == "all":
    e(f"s_mul_i32 s{sR6}, s{sT0}, 3"); e(f"s_lshr_b32 s{sR6}, s{sR6}, 2")
elif args.r6 == "two":
    e(f"s_bfe_u32 s{sR6}, s{sT0}, 0x10001"); e(f"s_mul_i32 s{sR6}, s{sR6}, 3")
elif args.r6 == "three":
    e(f"s_mul_i32 s{sR6}, s{sT0}, 3"); e(f"s_lshr_b32 s{sR6}, s{sR6}, 3"); e(f"s_lshl_b32 s{sR6}, s{sR6}, 1")
else:
    e(f"s_mov_b32 s{sR6}, 0")
e(f"s_lshl_b32 s{sT0}, s{sT0}, 7")
vQ, vL3, vC7, vM = vT[1], vT[3], vT[5], vT[4]
cm("w voffset: (l>>3)*4 rows, chunk l&7")
e(f"v_lshrrev_b32 v{vL3}, 3, v{vLANE}")
e(f"v_and_b32 v{vC7}, 7, v{vLANE}")
e(f"v_lshlrev_b32 v{vT[2]}, 13, v{vL3}")
e(f"v_lshl_add_u32 v{vT[2]}, v{vC7}, 4, v{vT[2]}")
e(f"s_lshl_b32 s{sTMP}, s{sWV}, 18")
e(f"s_lshl_b32 s{sTMP2}, s{sNT}, 7")
e(f"s_add_u32 s{sTMP}, s{sTMP}, s{sTMP2}")
e(f"v_add_u32 v{vW}, s{sTMP}, v{vT[2]}")
e(f"v_add_u32 v{vW2}, 0x1000, v{vW}")
cm("x DMA voffsets: instr i=1+4g+k uses vXK[k] (+k*7168), inst offset k*1024, soffset g*32768+half")
e(f"v_lshrrev_b32 v{vQ}, 4, v{vLANE}")
e(f"v_xor_b32 v{vT[2]}, v{vC7}, v{vQ}")
e(f"v_lshlrev_b32 v{vT[2]}, 4, v{vT[2]}")
e(f"v_lshl_add_u32 v{vT[2]}, v{vL3}, 10, v{vT[2]}")
e(f"s_lshl_b32 s{sTMP}, s{sWV}, 8")
e(f"s_lshl_b32 s{sTMP2}, s{sT0}, 10")
e(f"s_add_u32 s{sTMP}, s{sTMP}, s{sTMP2}")
e(f"s_sub_u32 s{sTMP2}, s{sTMP}, 4096")
e(f"v_add_u32 v{vX0}, s{sTMP2}, v{vT[2]}")
e(f"s_add_u32 s{sTMP2}, s{sTMP}, {4096 + 7168}")
e(f"v_add_u32 v{vXK1}, s{sTMP2}, v{vT[2]}")
e(f"v_add_u32 v{vXK3}, {2*7168}, v{vXK1}")
e(f"v_xor_b32 v{vT[2]}, 64, v{vT[2]}")
e(f"s_add_u32 s{sTMP2}, s{sTMP}, 4096")
e(f"v_add_u32 v{vXK0}, s{sTMP2}, v{vT[2]}")
e(f"v_add_u32 v{vXK2}, {2*7168}, v{vXK0}")
def goff(u):
    e(f"s_add_u32 s{sTMP}, s{sR6}, {u}")
    e(f"s_cmp_ge_u32 s{sTMP}, 6")
    e(f"s_cselect_b32 s{sTMP2}, 6, 0")
    e(f"s_sub_u32 s{sTMP}, s{sTMP}, s{sTMP2}")
    e(f"s_lshr_b32 s{sTMP2}, s{sTMP}, 1")
    e(f"s_lshl_b32 s{sTMP2}, s{sTMP2}, 20")
    e(f"s_and_b32 s{sTMP}, s{sTMP}, 1")
    e(f"s_lshl_b32 s{sTMP}, s{sTMP}, 16")
    e(f"s_or_b32 s{sTMP}, s{sTMP}, s{sTMP2}")
    e(f"s_or_b32 s{sGOFF+u}, s{sTMP}, s{sHH}")
    e(f"s_xor_b32 s{sGOFF+6+u}, s{sGOFF+u}, 0x20000")
e(f"s_lshl_b32 s{sHH}, s{sH0}, 17")
pro = args.pro.split(",")
early = sorted(set(int(n[1:]) % 6 for n in pro[:pro.index("S")] if n[0] == "G"))
for u in early: goff(u)
e(f"s_mul_i32 s{sLB}, s{sWV}, {LDS_W}")
e(f"s_lshl_b32 s{sH0}, s{sH0}, 7")
e(f"s_xor_b32 s{sXH}, s{sH0}, 128")
e(f"s_mul_i32 s{sBAT}, s3, 1024000")
e(f"v_lshlrev_b32 v{vT[2]}, 4, v{vLANE}")
e(f"s_lshl_b32 s{sTMP}, s{sMT}, 18")
e(f"s_lshl_b32 s{sTMP2}, s{sWV}, 10")
e(f"s_add_u32 s{sTMP}, s{sTMP}, s{sTMP2}")
e(f"s_lshl_b32 s{sTMP2}, s{sNT}, 14")
e(f"s_add_u32 s{sTMP}, s{sTMP}, s{sTMP2}")
e(f"v_add_u32 v{vZS}, s{sTMP}, v{vT[2]}")
e(f"s_mov_b32 s{sP1}, 4096"); e(f"s_mov_b32 s{sP2}, 8192"); e(f"s_mov_b32 s{sP3}, 12288")
for i in range(4): e(f"v_mov_b32 v{vC+16+i}, -1")
e(f"s_mov_b32 s{SZ+2}, 0x10000000"); e(f"s_mov_b32 s{SZ+3}, 0x20000")
e(f"s_mov_b32 s{SW+2}, 3145728"); e(f"s_mov_b32 s{SW+3}, 0x20000")
e(f"s_mov_b32 s{SX+2}, 1024000"); e(f"s_mov_b32 s{SX+3}, 0x20000")
e("s_waitcnt lgkmcnt(0)")
stamp()
e(f"s_mov_b32 s{SW}, s6"); e(f"s_mov_b32 s{SW+1}, s7")
e(f"s_add_u32 s{SX}, s4, s{sBAT}"); e(f"s_addc_u32 s{SX+1}, s5, 0")
e(f"s_mov_b32 s{SZ}, s14"); e(f"s_mov_b32 s{SZ+1}, s15")

ldn = [0]
def ldtmp():
    r = sLD + (ldn[0] % 4); ldn[0] += 1
    return r
def x_instr(second, idxs):
    sh = sXH if second else sH0
    L = []; curg = None; t = None
    for i in idxs:
        tag = f"X{second}_{i}"
        if i == 0:
            L.append([f"s_add_u32 m0, s{sLB}, {second*XHALF}", "s_nop 0",
                      ("vm", tag, f"buffer_load_dwordx4 v{vX0}, s[{SX}:{SX+3}], s{sh} offen lds")]); curg = None
            continue
        g, k = (i - 1) // 4, (i - 1) % 4
        grp = []
        if g != curg:
            t = ldtmp(); curg = g
            grp += [f"s_add_u32 m0, s{sLB}, {second*XHALF + 1024 + g*4096}", f"s_add_u32 s{t}, s{sh}, {g*32768}"]
        if i == 16: grp.append("s_mov_b64 exec, 0xffffffff")
        grp.append(("vm", tag, f"buffer_load_dwordx4 v{vXK[k]}, s[{SX}:{SX+3}], s{t} offen" + (f" offset:{k*1024}" if k else "") + " lds"))
        if i == 16: grp.append("s_mov_b64 exec, -1")
        L.append(grp)
    return L
def quarter(rot, k):
    order = list(range(4*rot, 17)) + list(range(0, 4*rot))
    cuts = [0, 5, 9, 13, 17]
    return order[cuts[k]:cuts[k+1]]
def ring(u): return vA + (u % 8) * 16
def w_loads(u):
    L = []
    for i in range(4):
        r = ring(u) + i * 4
        L.append([("vm", f"G{u}_{i}", f"buffer_load_dwordx4 v[{r}:{r+3}], v{vW2 if i >= 2 else vW}, s[{SW}:{SW+3}], s{sGOFF+u} offen" + (" offset:2048" if i % 2 else ""))])
    return L
def wo_loads(s2):
    L = []
    a, pi = s2 >> 1, s2 & 1
    for jj in range(8):
        r = vA + s2 * 32 + jj * 4
        off = pi * 2048 + (jj & 1) * 1024
        L.append([("vm", f"O{s2}_{jj}", f"buffer_load_dwordx4 v[{r}:{r+3}], v{vWO}, s[{SWO}:{SWO+3}], s{sWOK + a*4 + (jj>>1)} offen" + (f" offset:{off}" if off else ""))])
    return L
def clears():
    return [[("vm", f"CLR{P}", f"buffer_store_dwordx4 v[{vC+16}:{vC+19}], v{vZS}, s[{SZ}:{SZ+3}], {['0', f's{sP1}', f's{sP2}', f's{sP3}'][P]} offen sc1")] for P in range(4)]

def setup():
    cm("remaining setup (while first loads fly)")
    e(f"s_lshl_b32 s{sTMP}, s{sMT}, 7")
    e(f"s_add_u32 s{sEOFF}, s{sTMP}, {EPOCH_BASE}")
    e(f"v_mov_b32 v{vZERO}, 0")
    emit(("vm", "EP", f"buffer_load_dword v{vEP}, v{vZERO}, s[{SZ}:{SZ+3}], s{sEOFF} offen sc1"))
    for u in range(6):
        if u not in early: goff(u)
    srd(SWO, 8, 9, 524288)
    e(f"s_add_u32 s{SOUT}, s10, s{sBAT}"); e(f"s_addc_u32 s{SOUT+1}, s11, 0"); e(f"s_mov_b32 s{SOUT+2}, 1024000"); e(f"s_mov_b32 s{SOUT+3}, 0x20000")
    for a in range(2):
        for rr in range(4): e(f"s_mov_b32 s{sWOK + a*4 + rr}, {(64*a + 8*rr)*1024}")
    e(f"s_mov_b32 s{sSELLO}, 0x05040100"); e(f"s_mov_b32 s{sSELHI}, 0x07060302")
    e(f"v_and_b32 v{vM}, 15, v{vLANE}")
    for u in range(6):
        e(f"s_lshr_b32 s{sTMP}, s{sGOFF+u}, 19")
        e(f"s_sub_u32 s{sTMP}, 4, s{sTMP}")
        e(f"v_add_u32 v{vT[2]}, s{sTMP}, v{vM}")
        e(f"s_lshr_b32 s{sTMP2}, s{sGOFF+u}, 14")
        e(f"s_and_b32 s{sTMP2}, s{sTMP2}, 4")
        e(f"v_bfe_u32 v{vT[6]}, v{vT[2]}, 1, 3")
        e(f"v_xor_b32 v{vT[6]}, v{vT[6]}, v{vQ}")
        e(f"v_xor_b32 v{vT[6]}, s{sTMP2}, v{vT[6]}")
        e(f"v_lshlrev_b32 v{vT[6]}, 4, v{vT[6]}")
        e(f"v_lshl_add_u32 v{vT[6]}, v{vT[2]}, 7, v{vT[6]}")
        e(f"v_add_u32 v{vXA+u}, s{sLB}, v{vT[6]}")
    e(f"v_and_b32 v{vT[2]}, 1, v{vQ}")
    e(f"v_lshlrev_b32 v{vT[2]}, 15, v{vT[2]}")
    e(f"v_lshrrev_b32 v{vT[6]}, 1, v{vQ}")
    e(f"v_lshl_add_u32 v{vT[2]}, v{vT[6]}, 12, v{vT[2]}")
    e(f"v_lshl_add_u32 v{vT[2]}, v{vM}, 4, v{vT[2]}")
    e(f"s_lshl_b32 s{sTMP}, s{sWV}, 17")
    e(f"s_lshl_b32 s{sTMP2}, s{sCG}, 8")
    e(f"s_add_u32 s{sTMP}, s{sTMP}, s{sTMP2}")
    e(f"v_add_u32 v{vWO}, s{sTMP}, v{vT[2]}")
    e(f"v_lshlrev_b32 v{vT[2]}, 4, v{vLANE}")
    e(f"v_add_u32 v{vRW}, s{sLB}, v{vT[2]}")
    e(f"s_lshl_b32 s{sTMP}, s{sWV}, 11")
    e(f"v_add_u32 v{vRR}, s{sTMP}, v{vT[2]}")
    e(f"v_lshrrev_b32 v{vT[2]}, 3, v{vM}")
    e(f"v_lshlrev_b32 v{vT[2]}, 12, v{vT[2]}")
    e(f"v_lshl_add_u32 v{vT[2]}, v{vQ}, 8, v{vT[2]}")
    e(f"v_lshl_add_u32 v{vT[2]}, v{vC7}, 4, v{vT[2]}")
    e(f"s_lshl_b32 s{sTMP}, s{sMT}, 18")
    e(f"s_lshl_b32 s{sTMP2}, s{sWV}, 15")
    e(f"s_add_u32 s{sTMP}, s{sTMP}, s{sTMP2}")
    e(f"s_lshr_b32 s{sTMP2}, s{sRP}, 1")
    e(f"s_lshl_b32 s{sTMP2}, s{sTMP2}, 11")
    e(f"s_add_u32 s{sTMP}, s{sTMP}, s{sTMP2}")
    e(f"s_and_b32 s{sTMP2}, s{sRP}, 1")
    e(f"s_lshl_b32 s{sTMP2}, s{sTMP2}, 7")
    e(f"s_add_u32 s{sTMP}, s{sTMP}, s{sTMP2}")
    e(f"v_add_u32 v{vZL}, s{sTMP}, v{vT[2]}")
    e(f"v_add_u32 v{vZL2}, 0x2000, v{vZL}")
    e(f"s_mov_b32 s{sK1}, 16384"); e(f"s_mov_b32 s{sK2}, 131072"); e(f"s_mov_b32 s{sK3}, 147456")
    e(f"v_lshrrev_b32 v{vT[2]}, 1, v{vQ}")
    e(f"v_lshlrev_b32 v{vT[2]}, 15, v{vT[2]}")
    e(f"v_and_b32 v{vT[6]}, 1, v{vQ}")
    e(f"v_lshl_add_u32 v{vT[2]}, v{vT[6]}, 12, v{vT[2]}")
    e(f"v_lshl_add_u32 v{vT[2]}, v{vM}, 4, v{vT[2]}")
    e(f"s_lshl_b32 s{sTMP2}, s{sRP}, 3")
    e(f"s_add_u32 s{sTMP}, s{sT0}, s{sTMP2}")
    e(f"s_lshl_b32 s{sTMP}, s{sTMP}, 10")
    e(f"s_lshl_b32 s{sTMP2}, s{sCG}, 8")
    e(f"s_add_u32 s{sTMP}, s{sTMP}, s{sTMP2}")
    e(f"s_lshl_b32 s{sTMP2}, s{sWV}, 2")
    e(f"s_add_u32 s{sTMP}, s{sTMP}, s{sTMP2}")
    e(f"v_add_u32 v{vOUT}, s{sTMP}, v{vT[2]}")
    e(f"s_lshl_b32 s{sTMP}, s{sMT}, 13")
    e(f"s_add_u32 s{sACK}, s{sTMP}, {FLAG_BASE}")
    e(f"s_lshl_b32 s{sTMP}, s{sNT}, 9")
    e(f"s_add_u32 s{sFLG}, s{sACK}, s{sTMP}")
    e(f"s_lshl_b32 s{sTMP}, s{sWV}, 7")
    e(f"s_add_u32 s{sFLG}, s{sFLG}, s{sTMP}")
    e(f"s_lshl_b32 s{sTMP}, s{sWV}, 10")
    e(f"s_add_u32 s{sACK}, s{sACK}, s{sTMP}")
    e(f"s_lshr_b32 s{sTMP}, s{sRP}, 1")
    e(f"s_lshl_b32 s{sTMP}, s{sTMP}, 8")
    e(f"s_add_u32 s{sACK}, s{sACK}, s{sTMP}")
    e(f"v_and_b32 v{vT[2]}, 1, v{vLANE}")
    e(f"v_lshlrev_b32 v{vT[2]}, 9, v{vT[2]}")
    e(f"v_bfe_u32 v{vT[6]}, v{vLANE}, 1, 1")
    e(f"v_lshl_add_u32 v{vT[2]}, v{vT[6]}, 12, v{vT[2]}")
    e(f"v_bfe_u32 v{vT[6]}, v{vLANE}, 2, 1")
    e(f"v_lshl_add_u32 v{vAKA}, v{vT[6]}, 7, v{vT[2]}")
    e("s_mov_b32 vcc_lo, 0x00ff00ff"); e("s_mov_b32 vcc_hi, 0x00ff00ff")
    e(f"s_mov_b32 s{sMSK}, 0xffff0000")
    e(f"v_add_u32 v{vT[0]}, {2*LDS_W}, v{vRR}")
    e(f"v_add_u32 v{vT[3]}, {LDS_W}, v{vRR}")
    e(f"v_add_u32 v{vT[4]}, {3*LDS_W}, v{vRR}")

NF = 4 if NM >= 3 else (3 if NM == 2 else 2)
def Fb(u): return vB + (u % NF) * 16
vE = vC
def xread(u, b, dst):
    return ("lg", f"XR{u}_{b}", f"ds_read_b128 a[{dst}:{dst+3}], v{vXA + u % 6} offset:{(u // 6) * XHALF + b * 2048}")
def xform(u):
    R = ring(u); F = Fb(u)
    H = []
    for hh in range(2):
        L = []
        for i in (2*hh, 2*hh + 1):
            for d in range(2):
                L.append(f"v_cndmask_b32_dpp v{vE + i*2 + d}, v{R+4*i+d+2}, v{R+4*i+d}, vcc row_ror:8 row_mask:0xf bank_mask:0xf")
            for d in range(2):
                L.append(f"v_mov_b32_dpp v{R+4*i+d+2}, v{R+4*i+d} row_ror:8 row_mask:0xf bank_mask:0x3")
        i0, i1 = 2*hh, 2*hh + 1
        for d in range(2):
            L.append(f"v_perm_b32 v{F + (2*d)*4 + hh}, v{vE+i1*2+d}, v{vE+i0*2+d}, s{sSELLO}")
            L.append(f"v_perm_b32 v{F + (2*d+1)*4 + hh}, v{vE+i1*2+d}, v{vE+i0*2+d}, s{sSELHI}")
        for d in range(2):
            L.append(f"v_perm_b32 v{F + (2*d)*4 + 2 + hh}, v{R+4*i1+d+2}, v{R+4*i0+d+2}, s{sSELLO}")
            L.append(f"v_perm_b32 v{F + (2*d+1)*4 + 2 + hh}, v{R+4*i1+d+2}, v{R+4*i0+d+2}, s{sSELHI}")
        L[0] = [("wait", f"G{u}_{2*hh+1}"), L[0]]
        H += L
    return H
def perm8(src, dst, kp):
    L = []
    for d in range(4):
        a = src + (2*kp) * 4 + d; b = src + (2*kp+1) * 4 + d
        L.append(f"v_perm_b32 v{dst + (2*d)*4 + kp}, v{b}, v{a}, s{sSELLO}")
        L.append(f"v_perm_b32 v{dst + (2*d+1)*4 + kp}, v{b}, v{a}, s{sSELHI}")
    return L

allg = list(range(1, 12))
cnt = {u: 1 for u in range(NS)}
for i in range(NM - 1): cnt[NS - 1 - i] = 2
xsched = {}; pos = 0
for u in range(NS):
    xsched[u] = allg[pos:pos + cnt[u]]; pos += cnt[u]
xslot = {0: -1}
for u, gs in xsched.items():
    for g in gs: xslot[g] = u
for g in range(1, 12): assert g - NF < xslot[g], (g, xslot[g])

def acc(b, j): return (b * 4 + j) * 4
def mfma(u, b, j, xf):
    c = "0" if u == 0 else f"a[{acc(b,j)}:{acc(b,j)+3}]"
    F = Fb(u)
    return f"v_mfma_f32_16x16x32_bf16 a[{acc(b,j)}:{acc(b,j)+3}], v[{F+4*j}:{F+4*j+3}], a[{xf}:{xf+3}], {c}"
def ph_xf(P, gi, bl): return aXF + ((NS + P) % 2) * 32 + (gi * 2 + bl) * 4
def ph_reads(P): return [xread(NS + gi, 2*P + bl, ph_xf(P, gi, bl)) for bl in range(2) for gi in range(NM)]

per = [int(x) for x in args.per.split(",")]
def build_seq(rot):
    seq = []
    for n in args.rest.split(","):
        if n[0] == "G":
            u = int(n[1:]); seq += [(xslot[u - 8] + 1 if u >= 8 else 0, g) for g in w_loads(u)]
        elif n[0] == "Y": seq += [(0, g) for g in x_instr(1, quarter(0, int(n[1:])))]
        elif n[0] == "C": seq += [(0, g) for g in clears()]
    for s2 in (2, 3, 0, 1):
        gs = [2*s2, 2*s2 + 1] if s2 >= 2 else [8 + 2*s2, 9 + 2*s2]
        seq += [(max(xslot[g] for g in gs) + 1, g) for g in wo_loads(s2)]
    return seq

def ackstore():
    last = "CLR3" if vmlist.index("CLR3") > vmlist.index("EP") else "EP"
    return [("wait", last), f"v_add_u32 v{vEP}, 1, v{vEP}", "s_mov_b64 exec, 1",
            ("vm", "ACKS", f"buffer_store_dword v{vEP}, v{vZERO}, s[{SZ}:{SZ+3}], s{sFLG} offen sc1"), "s_mov_b64 exec, -1"]
def slot(u, rot=0):
    global seq
    cm(f"---- slot {u}")
    XF = aXF + (u % 2) * 32
    pre = [[] for _ in range(32)]
    lds = []
    p = per[min(u, len(per) - 1)]
    while seq and len(lds) < p and seq[0][0] <= u: lds.append(seq.pop(0)[1])
    if u == args.ackslot: lds.append(ackstore())
    nxt = [xread(u + 1, b, aXF + ((u+1) % 2) * 32 + 4*b) for b in range(8)] if u + 1 < NS else ph_reads(0)
    if u == 5: nxt[0] = [("wait", "X1_16"), nxt[0]]
    xf = []
    for g in xsched[u]: xf += xform(g)
    border = list(range(8))
    if u == 0:
        border = [(2*rot + k) % 8 for k in range(8)]
        order = list(range(4*rot, 17)) + list(range(0, 4*rot))
        def need(b): return max((2*b, 2*b+1, 2*b+2), key=lambda i: order.index(i))
        for k, b in enumerate(border):
            if k == 0: pre[0] += [("wait", f"X0_{need(b)}"), xread(0, b, XF + 4*b)]
            if k + 1 < 8:
                b2 = border[k+1]
                pre[4*k] += [("wait", f"X0_{need(b2)}"), xread(0, b2, XF + 4*b2)]
            pre[4*k] += [("lwait", f"XR0_{b}")]
        fill = schedule(32, [(lds, 0, 32), (nxt, 24, 32), (xf, 6, 31)])
    else:
        pre[0].append(("lwait", lglist[-1]))
        lo = 16 if u == 5 else 0
        fill = schedule(32, [(lds, 0, 32), (nxt, lo, 28), (xf, 0 if len(xsched[u]) > 1 else 4, 31)])
    for i in range(32):
        emits(pre[i])
        b = border[i // 4]
        e(mfma(u, b, i % 4, XF + 4 * b))
        emits(fill[i])
    if args.slotstamps == 1: stamp(1)

def canon(L, rot):
    return L
nvar = 4 if args.xrot else 1
save = (list(vmlist), list(lglist), nst[0], ldn[0])
if nvar > 1:
    for r in range(1, 4):
        e(f"s_cmp_eq_u32 s{sCG}, {r}")
        e(f"s_cbranch_scc1 L_var{r}")
ends = []
for rot in range(nvar):
    vmlist[:] = save[0]; lglist[:] = save[1]; nst[0] = save[2]; ldn[0] = save[3]
    if rot: lab(f"L_var{rot}")
    for n in pro:
        if n == "S": setup()
        elif n == "C": emits(clears())
        elif n[0] == "G": emits(w_loads(int(n[1:])))
        elif n[0] == "Q": emits(x_instr(0, quarter(rot, int(n[1:]))))
        elif n[0] == "Y": emits(x_instr(1, quarter(rot, int(n[1:]))))
    stamp()
    emits(xform(0))
    stamp()
    ldn[0] = 0
    seq = build_seq(rot)
    slot(0, rot)
    if rot < nvar - 1: e("s_branch L_join")
    ends.append((len(vmlist), len(lglist), [t for t in vmlist if not t.startswith("X")], len(seq)))
    if rot == 0: keep = (list(vmlist), list(lglist))
assert all(x == ends[0] for x in ends)
lastx1 = [i for i, t in enumerate(vmlist) if t.startswith("X1_")]
vmlist[:] = keep[0]; lglist[:] = keep[1]
lab("L_join")
for u in range(1, NS): slot(u)
stamp()

def red_reads(P, dst, base_off):
    L = []
    bases = [vRR, vT[3], vT[0], vT[4]]
    for src in range(4):
        for k in range(2):
            r = dst + (src*2 + k) * 4
            L.append(("lg", f"RR{P}_{src}_{k}", f"ds_read_b128 v[{r}:{r+3}], v{bases[src]} offset:{base_off + k * 1024}"))
    return L
def sum4(P, D, pk):
    L = []
    def add(d, a, b, n=8):
        if pk: return [f"v_pk_add_f32 v[{d+i}:{d+i+1}], v[{a+i}:{a+i+1}], v[{b+i}:{b+i+1}]" for i in range(0, n, 2)]
        return [f"v_add_f32 v{d+i}, v{a+i}, v{b+i}" for i in range(n)]
    x = add(D, D, D + 8); x[0] = [("lwait", f"RR{P}_1_1"), x[0]]; L += x
    x = add(D + 16, D + 16, D + 24); x[0] = [("lwait", f"RR{P}_3_1"), x[0]]; L += x
    L += add(D, D, D + 16)
    return L
def act_ops(P, kind, D, pk):
    L = sum4(P, D, pk)
    h, t, lo, pkr = D, D + 8, D + 16, D + 24
    if pk:
        for i in range(0, 8, 2): L.append(f"v_pk_mul_f32 v[{t+i}:{t+i+1}], v[{h+i}:{h+i+1}], s[{sACT}:{sACT+1}] op_sel_hi:[1,0]")
    else:
        for i in range(8): L.append(f"v_mul_f32 v{t+i}, s{sACT}, v{h+i}")
    for i in range(8): L.append(f"v_exp_f32 v{t+i}, v{t+i}")
    if pk:
        for i in range(0, 8, 2): L.append(f"v_pk_add_f32 v[{t+i}:{t+i+1}], v[{t+i}:{t+i+1}], 1.0 op_sel_hi:[1,0]")
    else:
        for i in range(8): L.append(f"v_add_f32 v{t+i}, 1.0, v{t+i}")
    for i in range(8): L.append(f"v_rcp_f32 v{t+i}, v{t+i}")
    if kind == "tanh":
        for i in range(8): L.append(f"v_fma_f32 v{lo+i}, -v{h+i}, |v{h+i}|, v{h+i}")
        if pk:
            for i in range(0, 8, 2): L.append(f"v_pk_fma_f32 v[{t+i}:{t+i+1}], v[{t+i}:{t+i+1}], -2.0, 1.0 op_sel_hi:[1,0,0]")
        else:
            for i in range(8): L.append(f"v_fma_f32 v{t+i}, v{t+i}, -2.0, 1.0")
        for i in range(8): L.append(f"v_med3_f32 v{t+i}, v{t+i}, v{h+i}, v{lo+i}")
    for r in range(4): L.append(f"v_cvt_pk_bf16_f32 v{pkr+r}, v{t+r}, v{t+4+r}")
    for r in range(4): L.append(f"v_min_u32 v{pkr+r}, -2, v{pkr+r}")
    so = ["0", f"s{sP1}", f"s{sP2}", f"s{sP3}"][P]
    L.append(("vm", f"ZS{P}", f"buffer_store_dwordx4 v[{pkr}:{pkr+3}], v{vZS}, s[{SZ}:{SZ+3}], {so} offen sc1"))
    return L

def final(kind):
    global seq
    e(f"s_mov_b32 s{sACT}, " + ("0x4038aa3b" if kind == "tanh" else "0xbfb8aa3b"))
    LAG = args.lag
    carry = []
    D = vC
    for P in range(5):
        cm(f"---- final phase {P} ({kind})")
        if P == 4:
            e("s_nop 7")
            for _, w in carry: emit(w)
            emit(("stamp",))
            emit(("lwait", "RW3_7")); e("s_barrier")
            emits(red_reads(3, D, 8192)); emits(act_ops(3, kind, D, True))
            break
        mf = []
        for jj in range(8):
            for gi in range(NM):
                mf.append(mfma(NS + gi, 2*P + jj // 4, jj % 4, ph_xf(P, gi, jj // 4)))
        ng = len(mf)
        wr = []
        for jj in range(8):
            a = acc(2*P, 0) + jj * 4
            wr.append((NM*(jj+1) - 1 + LAG, ("lg", f"RW{P}_{jj}", f"ds_write_b128 v{vRW}, a[{a}:{a+3}] offset:{(P & 1) * 8192 + jj * 1024}")))
        streams = []
        for g, w in carry: streams.append(([w], g - ng, g - ng + 1))
        bar = (max(g for g, w in carry) - ng + 2) if carry else None
        carry = [(g, w) for g, w in wr if g >= ng]
        if P > 0:
            assert bar < NM - 1 + LAG, (bar, NM, LAG)
            streams.append(([[("lwait", f"RW{P-1}_7"), "s_barrier"] + ([("stamp", 2)] if args.slotstamps == 2 else []) + red_reads(P - 1, D, ((P-1) & 1) * 8192)], bar, bar + 1))
        for g, w in wr:
            if g < ng: streams.append(([w], g, g + 1))
        if P < 3: streams.append((ph_reads(P + 1), (bar + 1) if bar is not None else 0, ng - 4))
        lds = []
        while seq and len(lds) < 6: lds.append(seq.pop(0)[1])
        if args.ackslot == 100 + P: lds.insert(0, ackstore())
        if P == args.ackld: lds.append(["s_mov_b64 exec, 0xff", ("vm", "ACKL", f"buffer_load_dword v{vACK}, v{vAKA}, s[{SZ}:{SZ+3}], s{sACK} offen sc1"), "s_mov_b64 exec, -1"])
        if lds: streams.append((lds, 0, ng))
        if P > 0: streams.append((act_ops(P - 1, kind, D, False), bar + 3, ng))
        fill = schedule(ng, streams)
        emit(("lwait", f"XR{NS+NM-1}_{2*P+1}"))
        if args.slotstamps == 2: stamp(2)
        for i in range(ng):
            e(mf[i]); emits(fill[i])
    assert not seq

save = (list(vmlist), list(lglist), list(seq), nst[0])
e(f"s_cmp_ge_u32 s{sNT}, 8")
e("s_cbranch_scc1 L_sig")
final("tanh")
e("s_branch L_actdone")
endstate = (list(vmlist), list(lglist))
vmlist[:] = save[0]; lglist[:] = save[1]; seq = list(save[2]); nst[0] = save[3]
lab("L_sig")
final("sig")
def dist(L, tag): return len(L) - 1 - max(i for i, t in enumerate(L) if t == tag)
dACK = min(dist(endstate[0], "ACKL"), dist(vmlist, "ACKL"))
dWO = min(dist(endstate[0], "O1_7"), dist(vmlist, "O1_7"))
lab("L_actdone")
stamp()

cm("---- phase 2")
e(f"s_waitcnt vmcnt({dACK})")
e("s_mov_b64 exec, 0xff")
e(f"v_cmp_ne_u32 vcc, v{vACK}, v{vEP}")
e("s_mov_b64 exec, -1")
e(f"s_mov_b32 s{sCNT}, 0")
e("s_cbranch_vccz L_ackok")
e("s_mov_b64 exec, 0xff")
lab("L_ackspin")
e("s_sleep 2")
e(f"buffer_load_dword v{vACK}, v{vAKA}, s[{SZ}:{SZ+3}], s{sACK} offen sc1")
e("s_waitcnt vmcnt(0)")
e(f"v_cmp_ne_u32 vcc, v{vACK}, v{vEP}")
e(f"s_add_u32 s{sCNT}, s{sCNT}, 1")
e(f"s_cmp_ge_u32 s{sCNT}, {args.spin}")
e("s_cbranch_scc1 L_ackout")
e("s_cbranch_vccnz L_ackspin")
lab("L_ackout")
e("s_mov_b64 exec, -1")
lab("L_ackok")
TS = vB
def ts_loads(blk):
    for s2 in range(4):
        for kind in range(2):
            r = TS + blk*32 + 8*s2 + 4*kind
            so = {(0,0): "0", (1,0): f"s{sK1}", (0,1): f"s{sK2}", (1,1): f"s{sK3}"}[(s2 >> 1, kind)]
            e(f"buffer_load_dwordx4 v[{r}:{r+3}], v{vZL2 if blk else vZL}, s[{SZ}:{SZ+3}], {so} offen offset:{(s2&1)*1024} sc1")
ts_loads(0)
FO = [vC, vA, vA + 32, vA + 64]
e(f"s_waitcnt vmcnt({dWO + 8})")
for s2 in range(4):
    for kp in range(4): emits(perm8(vA + s2*32, FO[s2], kp))
stamp()
def acc2(b, j): return aACC2 + (b*8 + j) * 4
TMPP = vA + 96
def prod(blk, k, pk):
    L = []
    T = TS + blk*32 + 8*k; S = T + 4; t = TMPP + (k % 2) * 16
    for d in range(4):
        L.append(f"v_lshlrev_b32 v{t+4*d}, 16, v{T+d}")
        L.append(f"v_and_b32 v{t+4*d+1}, s{sMSK}, v{T+d}")
        L.append(f"v_lshlrev_b32 v{t+4*d+2}, 16, v{S+d}")
        L.append(f"v_and_b32 v{t+4*d+3}, s{sMSK}, v{S+d}")
    for d in range(4):
        if pk: L.append(f"v_pk_mul_f32 v[{t+4*d}:{t+4*d+1}], v[{t+4*d}:{t+4*d+1}], v[{t+4*d+2}:{t+4*d+3}]")
        else:
            L.append(f"v_mul_f32 v{t+4*d}, v{t+4*d}, v{t+4*d+2}"); L.append(f"v_mul_f32 v{t+4*d+1}, v{t+4*d+1}, v{t+4*d+3}")
    for d in range(4):
        L.append(f"v_cvt_pk_bf16_f32 v{T+d}, v{t+4*d}, v{t+4*d+1}")
    return L
def check(blk, k):
    T = TS + blk*32 + 8*k
    return [f"s_waitcnt vmcnt({6 - 2*k})",
            f"v_max3_u32 v{vT[1]}, v{T}, v{T+1}, v{T+2}",
            f"v_max3_u32 v{vT[2]}, v{T+3}, v{T+4}, v{T+5}",
            f"v_max3_u32 v{vT[1]}, v{vT[1]}, v{T+6}, v{T+7}",
            f"v_max_u32 v{vT[1]}, v{vT[1]}, v{vT[2]}",
            f"v_cmp_eq_u32 vcc, -1, v{vT[1]}",
            f"s_cbranch_vccnz L_retry{blk}"]
for blk in range(2):
    cm(f"---- block {blk}")
    e(f"s_mov_b32 s{sCNT}, 0")
    e(f"s_branch L_blk{blk}")
    lab(f"L_retry{blk}")
    e(f"s_add_u32 s{sCNT}, s{sCNT}, 1")
    e(f"s_cmp_ge_u32 s{sCNT}, {args.spin}")
    e(f"s_cbranch_scc1 L_end")
    e("s_waitcnt vmcnt(0)")
    ts_loads(blk)
    lab(f"L_blk{blk}")
    emits(check(blk, 0))
    emits(prod(blk, 0, True))
    e("s_nop 1")
    R2 = XHALF + 1024 + blk * 8192
    for k in range(4):
        r = TS + blk*32 + 8*k
        nxt = (check(blk, k + 1) + prod(blk, k + 1, False) + ["s_nop 1"]) if k < 3 else []
        fill = schedule(8, [(nxt, 0, 8)]) if nxt else [[] for _ in range(8)]
        for j in range(8):
            c = "0" if k == 0 else f"a[{acc2(blk,j)}:{acc2(blk,j)+3}]"
            e(f"v_mfma_f32_16x16x32_bf16 a[{acc2(blk,j)}:{acc2(blk,j)+3}], v[{r}:{r+3}], v[{FO[k]+4*j}:{FO[k]+4*j+3}], {c}")
            emits(fill[j])
            if k == 3 and j >= 3: e(f"ds_write_b128 v{vRW}, a[{acc2(blk,j-3)}:{acc2(blk,j-3)+3}] offset:{R2 + (j-3)*1024}")
    if blk == 0: ts_loads(1)
    else: e("s_nop 4")
    stamp()
    for j in range(5, 8):
        e(f"ds_write_b128 v{vRW}, a[{acc2(blk,j)}:{acc2(blk,j)+3}] offset:{R2 + j*1024}")
    e("s_waitcnt lgkmcnt(0)")
    e("s_barrier")
    O = TS + blk*32
    emits(red_reads(10 + blk, O, R2))
    emits(sum4(10 + blk, O, True))
    for r in range(4): e(f"v_cvt_pk_bf16_f32 v{O+8+r}, v{O+r}, v{O+4+r}")
    if blk == 0:
        OUTA = [O + 8 + r for r in range(4)]
    else:
        e(f"s_mov_b32 s{sTMP}, 0x10000")
        for r in range(4): e(f"buffer_store_dword v{O+8+r}, v{vOUT}, s[{SOUT}:{SOUT+3}], s{sTMP} offen offset:{r*1024}")
        for r in range(4): e(f"buffer_store_dword v{OUTA[r]}, v{vOUT}, s[{SOUT}:{SOUT+3}], 0 offen offset:{r*1024}")
e(f"s_or_b32 s{sTMP}, s{sNT}, s{sWV}")
e(f"s_cmp_lg_u32 s{sTMP}, 0")
e("s_cbranch_scc1 L_noep")
e("s_mov_b64 exec, 1")
e(f"buffer_store_dword v{vEP}, v{vZERO}, s[{SZ}:{SZ+3}], s{sEOFF} offen sc1")
e("s_mov_b64 exec, -1")
lab("L_noep")
if STAMPS == 3:
    e("s_waitcnt vmcnt(0)")
    stamp()
    e("s_waitcnt lgkmcnt(0)")
    if args.probe > 0:
        e(f"s_sub_u32 s{sTMP}, s{sST+2*args.probe}, s{sST}")
        if args.real: e(f"s_mul_i32 s{sTMP}, s{sTMP}, 10")
        else: e(f"s_lshr_b32 s{sTMP}, s{sTMP}, 1")
    else:
        e(f"s_mov_b32 s{sTMP}, 0")
    e(f"s_add_u32 s{sTMP}, s{sTMP}, 4000")
    lab("L_spin")
    e("s_sleep 2")
    e("s_memrealtime s[78:79]")
    e("s_waitcnt lgkmcnt(0)")
    e(f"s_sub_u32 s{sTMP2}, s78, s76")
    e(f"s_cmp_lt_u32 s{sTMP2}, s{sTMP}")
    e("s_cbranch_scc1 L_spin")
elif STAMPS:
    e("s_waitcnt vmcnt(0)")
    stamp()
    e("s_memrealtime s[78:79]")
    e("s_waitcnt lgkmcnt(0)")
    n = nst[0]
    assert n <= 11, n
    e(f"v_mov_b32 v{vB}, s76"); e(f"v_mov_b32 v{vB+1}, s78"); e(f"v_mov_b32 v{vB+2}, s{sCNT}"); e(f"v_mov_b32 v{vB+3}, s2")
    for i in range(1, n):
        e(f"s_sub_u32 s{sST+2*i}, s{sST+2*i}, s{sST}")
        e(f"v_mov_b32 v{vB+3+i}, s{sST+2*i}")
    e(f"s_lshl_b32 s{sTMP}, s2, 2"); e(f"s_add_u32 s{sTMP}, s{sTMP}, s{sWV}"); e(f"s_lshl_b32 s{sTMP}, s{sTMP}, 6"); e(f"s_add_u32 s{sTMP}, s{sTMP}, 0x8000000")
    e("s_mov_b64 exec, 1")
    for i in range(4):
        e(f"buffer_store_dwordx4 v[{vB+4*i}:{vB+4*i+3}], v{vZERO}, s[{SZ}:{SZ+3}], s{sTMP} offen offset:{16*i}")
lab("L_end")
e("s_endpgm")
out.append('.section .rodata,"a"'); out.append(".p2align 6"); out.append(f".amdhsa_kernel {name}")
for l in [".amdhsa_next_free_vgpr 512", ".amdhsa_next_free_sgpr 102", ".amdhsa_accum_offset 256", ".amdhsa_group_segment_fixed_size 0", ".amdhsa_kernarg_size 48", ".amdhsa_user_sgpr_count 2", ".amdhsa_user_sgpr_kernarg_segment_ptr 1", ".amdhsa_system_sgpr_workgroup_id_x 1"]:
    out.append("  " + l)
out.append(".end_amdhsa_kernel")
print("\n".join(out))
```
